```python
import torch

def _softmax(x, axis=-1):
    return torch.softmax(x, dim=axis)
def _gelu(x):
    return torch.nn.functional.gelu(x, approximate="tanh")
def _silu(x):
    return torch.nn.functional.silu(x)
def _sigmoid(x):
    return torch.sigmoid(x)
def _layernorm(x, axis=-1, eps=1e-5):
    m = x.mean(dim=axis, keepdim=True)
    v = x.var(dim=axis, keepdim=True, unbiased=False)
    return (x - m) / torch.sqrt(v + eps)
def _scatter_add(tgt, idx, src, axis=0):
    return tgt.clone().index_add_(axis, idx, src)
def _segment_sum(src, seg, n):
    out = torch.zeros((n,) + src.shape[1:], dtype=src.dtype)
    return out.index_add_(0, seg, src)
def _pad(x, pw):
    flat = tuple(v for pair in reversed(pw) for v in pair)
    return torch.nn.functional.pad(x, flat)

kernel_name = 'concat_heads__linear_kernel_hedgehog__ssm_conv_s4d__prompt'

def setup_inputs():

    _w = (lambda a: (lambda t: t.to(torch.bfloat16) if t.is_floating_point() else t)(torch.as_tensor(a)))
    def _A_setup():
        B, S, D, H = 1, 2048, 448, 16
        Dh = D // H
        return {
            "x": _w((lambda *s: torch.randn(*s, dtype=torch.bfloat16) * 0.4)(B, S, D)),
            "wqkv": _w((lambda *s: torch.randn(*s, dtype=torch.bfloat16) * 0.4)(D, 3 * D)),
            "w_phi": _w((lambda *s: torch.randn(*s, dtype=torch.bfloat16) * 0.4)(H, Dh, Dh) * (Dh ** -0.5)),
            "wo": _w((lambda *s: torch.randn(*s, dtype=torch.bfloat16) * 0.05)(D, D)),
        }
    _A_in = _A_setup()

    def _B_setup():
        Bsz, L, D, N = 1, 2048, 448, 256
        return {
            "u": _w((lambda *s: torch.randn(*s, dtype=torch.bfloat16) * 0.05)(Bsz, L, D)),
            "log_A_real": _w((lambda *s: torch.randn(*s, dtype=torch.bfloat16) * 3.2)(D, N) * 0.5),
            "A_imag": _w((lambda *s: torch.randn(*s, dtype=torch.bfloat16) * 0.2)(D, N) * 3.14),
            "C_real": _w((lambda *s: torch.randn(*s, dtype=torch.bfloat16) * 3.2)(D, N) / N ** 0.5),
            "C_imag": _w((lambda *s: torch.randn(*s, dtype=torch.bfloat16) * 3.2)(D, N) / N ** 0.5),
            "log_dt": _w((lambda *s: torch.randn(*s, dtype=torch.bfloat16) * 0.2)(D) * 0.5 - 4.0),
            "D_skip": _w((lambda *s: torch.randn(*s, dtype=torch.bfloat16) * 0.4)(D)),
        }
    _B_in = _B_setup()

    return {
        "A_x": _A_in["x"],
        "A_wqkv": _A_in["wqkv"],
        "A_w_phi": _A_in["w_phi"],
        "A_wo": _A_in["wo"],
        "B_u": _B_in["u"],
        "B_log_A_real": _B_in["log_A_real"],
        "B_A_imag": _B_in["A_imag"],
        "B_C_real": _B_in["C_real"],
        "B_C_imag": _B_in["C_imag"],
        "B_log_dt": _B_in["log_dt"],
        "B_D_skip": _B_in["D_skip"],
    }

def reference(A_x, A_wqkv, A_w_phi, A_wo, B_u, B_log_A_real, B_A_imag, B_C_real, B_C_imag, B_log_dt, B_D_skip):
    def _A_ref(x, wqkv, w_phi, wo):
        B, S, D = x.shape
        H = 16; Dh = D // H
        qkv = (lambda x, *d: x.permute(*d))((x @ wqkv).reshape(B, S, 3, H, Dh), 2, 0, 3, 1, 4)
        q, k, v = qkv[0], qkv[1], qkv[2]
        pq = torch.einsum("bhsd,hdf->bhsf", q, w_phi)
        pk = torch.einsum("bhsd,hdf->bhsf", k, w_phi)
        phi_q = torch.concatenate([_softmax(pq, axis=-1), _softmax(-pq, axis=-1)], axis=-1)
        phi_k = torch.concatenate([_softmax(pk, axis=-1), _softmax(-pk, axis=-1)], axis=-1)
        kv = torch.einsum("bhsf,bhsd->bhfd", phi_k, v)
        z  = torch.einsum("bhsf->bhf", phi_k)
        num = torch.einsum("bhqf,bhfd->bhqd", phi_q, kv)
        den = torch.einsum("bhqf,bhf->bhq", phi_q, z)[..., None] + 1e-6
        o = num / den
        return (lambda x, *d: x.permute(*d))(o, 0, 2, 1, 3).reshape(B, S, D) @ wo

    def _B_ref(u, log_A_real, A_imag, C_real, C_imag, log_dt, D_skip):
        L = u.shape[1]
        dt = torch.exp(log_dt)
        A = -torch.exp(log_A_real) + 1j * A_imag
        C = (C_real + 1j * C_imag) * dt[:, None]
        pos = (lambda x, dt: x.to(dt))(torch.arange(L), log_dt.dtype)
        P = torch.exp((A * dt[:, None])[:, :, None] * pos[None, None, :])
        K = 2.0 * torch.einsum("dn,dnl->dl", C, P).real
        L2 = 2 * L
        u_t = (lambda x, *d: x.permute(*d))(u, 0, 2, 1)
        Kf = (lambda x, *a, **k: torch.fft.rfft(x.float(), *a, **k))(K, L2)
        Uf = (lambda x, *a, **k: torch.fft.rfft(x.float(), *a, **k))(u_t, L2)
        y = (lambda x, *a, **k: torch.fft.irfft(x, *a, **k).to(torch.bfloat16))(Uf * Kf[None, :, :], L2)[:, :, :L]
        y = (lambda x, *d: x.permute(*d))(y, 0, 2, 1)
        return y + u * D_skip[None, None, :]

    a = _A_ref(A_x, A_wqkv, A_w_phi, A_wo)
    b = _B_ref(B_u, B_log_A_real, B_A_imag, B_C_real, B_C_imag, B_log_dt, B_D_skip)
    return torch.concatenate([a, b], axis=-1)
```

```python
import re

TRANS = ('v_exp_f32','v_log_f32','v_rcp_f32','v_rsq_f32','v_sqrt_f32','v_sin_f32','v_cos_f32','v_rcp_iflag_f32')

def _regs(tok):
    tok = tok.strip()
    neg = tok.startswith('-')
    if neg: tok = tok[1:]
    m = re.fullmatch(r'abs\((.*)\)', tok)
    if m: tok = m.group(1)
    m = re.fullmatch(r'\|(.*)\|', tok)
    if m: tok = m.group(1)
    m = re.fullmatch(r'([vsa])(\d+)', tok)
    if m: return [(m.group(1), int(m.group(2)))]
    m = re.fullmatch(r'([vsa])\[(\d+):(\d+)\]', tok)
    if m: return [(m.group(1), i) for i in range(int(m.group(2)), int(m.group(3))+1)]
    if tok == 'vcc': return [('s','vcc_lo'),('s','vcc_hi')]
    if tok in ('vcc_lo','vcc_hi','m0','scc'): return [('s',tok)]
    if tok == 'exec': return [('s','exec_lo'),('s','exec_hi')]
    if tok in ('exec_lo','exec_hi'): return [('s',tok)]
    return []

class Ins:
    __slots__ = ('text','op','ops','vr','vw','sr','sw','kind','passes','dpp','label','target','srcc','states','mods')
    def __init__(self, text):
        self.text = text
        self.label = None; self.target = None
        self.vr=set(); self.vw=set(); self.sr=set(); self.sw=set(); self.srcc=set()
        self.kind='other'; self.passes=0; self.dpp=False; self.states=1
        t = text.split(';')[0].strip()
        if t.endswith(':') and ' ' not in t:
            self.label = t[:-1]; self.kind='label'; self.op=''; self.states=0; return
        if t.startswith('.') or t == '':
            self.kind='directive'; self.op=''; self.states=0; return
        parts = t.split(None,1)
        op = parts[0]; self.op = op
        rest = parts[1] if len(parts)>1 else ''
        ops=[]; cur=''; depth=0
        for ch in rest:
            if ch in '[(': depth+=1
            if ch in '])': depth-=1
            if ch==',' and depth==0: ops.append(cur.strip()); cur=''
            else: cur+=ch
        if cur.strip(): ops.append(cur.strip())
        mods=''
        if ops:
            last = ops[-1]
            sp = last.split(None,1)
            ops[-1]=sp[0]
            if len(sp)>1: mods=sp[1]
        self.ops=ops; self.mods=mods
        R=lambda i: _regs(ops[i]) if i < len(ops) else []
        def rd(lst):
            for k,n in lst:
                (self.vr if k in 'va' else self.sr).add(n)
        def wr(lst):
            for k,n in lst:
                (self.vw if k in 'va' else self.sw).add(n)
        base = op
        for suf in ('_e32','_e64','_dpp','_sdwa'):
            if base.endswith(suf): base = base[:-len(suf)]
        if op.endswith('_dpp') or 'quad_perm' in mods or 'row_' in mods or 'wave_' in mods: self.dpp=True
        if base == 's_nop':
            self.kind='nop'; self.states=int(ops[0],0)+1; return
        if base in ('s_branch','s_cbranch_scc0','s_cbranch_scc1','s_cbranch_vccz','s_cbranch_vccnz','s_cbranch_execz','s_cbranch_execnz'):
            self.kind='branch'; self.target=ops[0]; return
        if base.startswith('v_mfma'):
            self.kind='mfma'
            self.passes = 8 if '32x32' in base else 4
            wr(R(0)); rd(R(1)); rd(R(2)); rd(R(3))
            self.srcc=set(n for k,n in R(3))
            return
        if base.startswith('v_'):
            self.kind='valu'
            if base in TRANS: self.kind='trans'
            if base.startswith('v_cmp'):
                wr(R(0));
                for i in range(1,len(ops)): rd(R(i))
                if base.startswith('v_cmpx'): wr(_regs('exec'))
                return
            if base in ('v_readfirstlane_b32','v_readlane_b32'):
                self.kind='readlane'
                wr(R(0)); rd(R(1)); rd(R(2)); return
            if base == 'v_writelane_b32':
                wr(R(0)); rd(R(0)); rd(R(1)); rd(R(2)); self.kind='writelane'; return
            if base.startswith('v_permlane'):
                self.kind='permlane'
                wr(R(0)); wr(R(1)); rd(R(0)); rd(R(1)); return
            if base in ('v_add_co_u32','v_sub_co_u32','v_subrev_co_u32'):
                wr(R(0)); wr(R(1)); rd(R(2)); rd(R(3)); return
            if base in ('v_addc_co_u32','v_subb_co_u32'):
                wr(R(0)); wr(R(1)); rd(R(2)); rd(R(3)); rd(R(4)); return
            wr(R(0))
            for i in range(1,len(ops)): rd(R(i))
            if base in ('v_fmac_f32','v_dot2c_f32_bf16','v_pk_fmac_f16','v_mac_f32'): rd(R(0))
            if self.dpp: rd(R(0))
            if base == 'v_cndmask_b32' and len(ops)==3: rd(_regs('vcc'))
            return
        if base.startswith('ds_'):
            self.kind='ds'
            if base.startswith('ds_read') or base.startswith('ds_bpermute') or base.startswith('ds_permute') or base.startswith('ds_swizzle'):
                wr(R(0))
                for i in range(1,len(ops)): rd(R(i))
                if 'addtid' in base: rd([('s','m0')])
            else:
                for i in range(len(ops)): rd(R(i))
                if 'addtid' in base: rd([('s','m0')])
                if 'rtn' in base: wr(R(0))
            return
        if base.startswith('buffer_') or base.startswith('global_'):
            self.kind='vmem'
            islds = (' lds' in (' '+mods)) or '_lds_' in base
            if base in ('buffer_inv','buffer_wbl2'): return
            if islds:
                for i in range(len(ops)): rd(R(i))
                rd([('s','m0')]); self.kind='ldsdma'; return
            if '_load' in base:
                wr(R(0))
                for i in range(1,len(ops)): rd(R(i))
            elif 'atomic' in base and ('sc0' in mods):
                wr(R(0))
                for i in range(0,len(ops)): rd(R(i))
            else:
                for i in range(len(ops)): rd(R(i))
                if ('x4' in base or 'x3' in base) and '_store' in base: self.kind='widestore'
            return
        if base.startswith('s_'):
            self.kind='salu'
            if base.startswith('s_load') or base.startswith('s_buffer_load') or base in ('s_memtime','s_memrealtime'):
                self.kind='smem'; wr(R(0))
                for i in range(1,len(ops)): rd(R(i))
                return
            if base in ('s_waitcnt','s_barrier','s_endpgm','s_sleep','s_setprio','s_setreg_b32','s_setreg_imm32_b32'): return
            if base.startswith('s_cmp') or base.startswith('s_bitcmp'):
                for i in range(len(ops)): rd(R(i))
                return
            if base in ('s_setpc_b64',):
                rd(R(0)); self.kind='branch'; self.target=None; return
            if base in ('s_swappc_b64',):
                wr(R(0)); rd(R(1)); self.kind='branch'; self.target=None; return
            wr(R(0))
            for i in range(1,len(ops)): rd(R(i))
            if 'saveexec' in base: wr(_regs('exec')); rd(_regs('exec'))
            return
        raise ValueError('unknown instruction: '+text)

def store_data_regs(ins):
    ops=ins.ops
    if ins.op.startswith('buffer_store'): return set(n for k,n in _regs(ops[0]))
    if ins.op.startswith('global_store'): return set(n for k,n in _regs(ops[1]))
    return set()

def required(prod, cons):
    need=0
    pv = prod.kind in ('valu','trans','permlane','readlane','writelane')
    cv = cons.kind in ('valu','trans','permlane','readlane','writelane')
    if prod.kind=='mfma':
        ov_r = prod.vw & cons.vr; ov_w = prod.vw & cons.vw
        P = prod.passes
        if cons.kind=='mfma':
            AB = cons.vr - cons.srcc
            ab_regs=set()
            for i in (1,2):
                ab_regs |= set(n for k,n in _regs(cons.ops[i]))
            if prod.vw & ab_regs: need=max(need, {4:8,8:12}[P])
            if prod.vw & cons.srcc:
                same = (prod.vw == cons.srcc) and prod.passes==cons.passes
                if not same: need=max(need, {4:6,8:10}[P])
            elif ov_w:
                need=max(need, {4:6,8:10}[P])
        else:
            if (ov_r or ov_w) and cons.kind in ('valu','trans','permlane','readlane','writelane','ds','vmem','widestore','ldsdma'):
                need=max(need, {4:8,8:12}[P])
            if cv and (prod.srcc & cons.vw): need=max(need, {4:3,8:7}[P])
    if pv:
        if cons.kind=='mfma' and (prod.vw & cons.vr): need=max(need,2)
        if cons.dpp and (prod.vw & cons.vr): need=max(need,2)
        if cons.kind=='permlane' and (prod.vw & cons.vr): need=max(need,2)
        if cons.kind=='readlane' and (prod.vw & cons.vr): need=max(need,1)
        if prod.kind=='trans' and cv and cons.kind!='trans' and (prod.vw & cons.vr): need=max(need,1)
        if prod.kind=='trans' and cons.kind=='trans' and (prod.vw & cons.vr): need=max(need,1)
        if prod.sw:
            o = prod.sw & cons.sr
            if o:
                if cons.kind in ('vmem','widestore','ldsdma','ds'): need=max(need,5)
                elif cons.kind in ('readlane','writelane'): need=max(need,4)
                elif cv: need=max(need,2)
                elif cons.kind=='mfma': need=max(need,4)
                elif cons.kind in ('salu','smem','branch'): need=max(need,1)
            if ('exec_lo' in prod.sw):
                if cons.dpp: need=max(need,5)
                if cons.kind in ('mfma','readlane','writelane','permlane'): need=max(need,4)
            if ('vcc_lo' in prod.sw) and cons.kind=='branch' and 'vcc' in cons.op: need=max(need,5)
    if prod.kind=='widestore':
        if cons.vw & store_data_regs(prod) and cons.kind not in ('label','directive'):
            need=max(need, 2)
    if prod.kind in ('salu',) and 'm0' in prod.sw:
        if cons.kind=='ldsdma' or (cons.kind=='ds' and 'addtid' in cons.op): need=max(need,1)
    return need

class Asm:
    def __init__(self):
        self.ins=[]
    def __call__(self, text):
        for line in text.split('\n'):
            line=line.strip()
            if not line or line.startswith(';'):
                continue
            self.ins.append(Ins(line))
    def label(self, name): self.ins.append(Ins(name+':'))
    MAXW=13
    def finalize(self):
        ins=self.ins
        labels={x.label:i for i,x in enumerate(ins) if x.kind=='label'}
        out=[]
        window=[]
        fwd_pending={}
        def need_for(win, c):
            n=0
            for p,age in win:
                r=required(p,c)
                if r-age>n: n=r-age
            return n
        def advance(win, x):
            st=x.states
            win=[(p,a+st) for p,a in win if a+st<self.MAXW]
            if x.kind not in ('label','directive','nop'): win.append((x,0))
            return win
        def emit_nop(n):
            nonlocal window
            while n>0:
                k=min(n,16)
                nop=Ins('s_nop %d'%(k-1)); out.append(nop); window=advance(window,nop); n-=k
        for i,x in enumerate(ins):
            if x.kind=='label':
                for w in fwd_pending.get(x.label,[]):
                    window = window + w
                out.append(x); continue
            if x.kind=='directive':
                out.append(x); continue
            n=need_for(window,x)
            emit_nop(n)
            if x.kind=='branch' and x.target is not None:
                tgt=labels.get(x.target)
                if tgt is None: raise ValueError('unknown label '+x.target)
                if tgt<=i:
                    w=advance(window,x); tot=0; extra=0
                    j=tgt;
                    ww=list(w)
                    while j<len(ins) and tot<self.MAXW:
                        y=ins[j]; j+=1
                        if y.kind in ('label','directive'): continue
                        r=need_for(ww,y)
                        if r>extra: extra=max(extra,r)
                        ww=[(p,a+y.states) for p,a in ww]; tot+=y.states
                        if y.kind=='branch':
                            break
                    emit_nop(extra)
                else:
                    fwd_pending.setdefault(x.target,[]).append(advance(window,x))
            out.append(x); window=advance(window,x)
            if x.kind=='branch' and (x.op=='s_branch' or x.op=='s_setpc_b64' or x.op=='s_endpgm'):
                window=[]
            if x.op=='s_endpgm': window=[]
        self.out=out
        return '\n'.join(('' if y.kind in ('label',) else '    ')+y.text for y in out)
```

```python
from asm import Asm
HDR_TARGET = '.amdgcn_target "amdgcn-amd-amdhsa--gfx950"\n'
def kernel_wrap(name, body, vgpr=256, sgpr=102):
    return f""".text
.globl {name}
.p2align 8
.type {name},@function
{name}:
{body}
.section .rodata,"a"
.p2align 6
.amdhsa_kernel {name}
  .amdhsa_next_free_vgpr {vgpr}
  .amdhsa_next_free_sgpr {sgpr}
  .amdhsa_accum_offset {(vgpr+3)//4*4}
  .amdhsa_group_segment_fixed_size 0
  .amdhsa_kernarg_size 112
  .amdhsa_user_sgpr_count 2
  .amdhsa_user_sgpr_kernarg_segment_ptr 1
  .amdhsa_system_sgpr_workgroup_id_x 1
.end_amdhsa_kernel
"""
```

```python
F1 = 0x0000
F2 = 0x0800
F3 = 0x1000
F4 = 0x1400
FLAG_BYTES = 0x2000
KVP = 0x10000
OF  = 0x200000
UT  = 0x400000
YT  = 0x600000
DBG = 0x1000000
NA = 256; NB = 224
CTRL = NA + NB
GRID = CTRL + 1
LDS_BYTES = 81920
S_X=4; S_WQKV=6; S_WPHI=8; S_WO=10; S_U=12; S_LOGA=14; S_AIM=16; S_CR=18; S_CI=20; S_LOGDT=22; S_DSK=24; S_OUT=26; S_DBG=28; S_WS=30
def sp(n): return f"s[{n}:{n+1}]"
def vr(a,n): return f"v[{a}:{a+n-1}]" if n>1 else f"v{a}"
SPIN_MAX = 400000
```

```python
from layout import *
LOG2E = '0x3fb8aa3b'
DPP1 = 'quad_perm:[1,0,3,2] row_mask:0xf bank_mask:0xf'
DPP2 = 'quad_perm:[2,3,0,1] row_mask:0xf bank_mask:0xf'
WKV = 0; WQ = 57344; WQ6 = 0; WPHI = 4096
RED = 8192
WOST = 15360
EX = 61440
OFR = 0
OUTT = 65536; OUT_S = 240
X = 16; TT = 128; ACCK = 140; ACCV = 156; WF = 172; WPH = 188; IDN = 196; P = 204; EM = 220; F = 236
WO = 16; G = 144; SUM = 208; KVF = 216; OA = 144; FA = 160; OB = 176
sTB,sH,sW,sTT,sCG = 32,33,34,35,36
sEVEN,sODD,sLO2,sHI2,sHI32,sD28 = 44,46,48,50,52,54
sL = 56
sLOs, sHIs = 58, 59
SRD_W = 64; SRD_P = 68; SRD_O = 72

def transpose_ops(g):
    R = [X+16*g+4*i for i in range(4)]
    A0, A2, T = TT, TT+4, TT+8
    s1 = []
    for d in range(4):
        s1 += [f"v_cndmask_b32_dpp v{A0+d}, v{R[1]+d}, v{R[0]+d}, vcc {DPP1}",
               f"v_mov_b32_dpp v{T+(2*d)%4}, v{R[0]+d} {DPP1}",
               f"v_cndmask_b32_dpp v{A2+d}, v{R[3]+d}, v{R[2]+d}, vcc {DPP1}",
               f"v_mov_b32_dpp v{T+(2*d+1)%4}, v{R[2]+d} {DPP1}",
               f"v_cndmask_b32_e64 v{R[1]+d}, v{T+(2*d)%4}, v{R[1]+d}, s[{sODD}:{sODD+1}]",
               f"v_cndmask_b32_e64 v{R[3]+d}, v{T+(2*d+1)%4}, v{R[3]+d}, s[{sODD}:{sODD+1}]"]
    s2 = []
    for d in range(4):
        s2 += [f"v_cndmask_b32_dpp v{R[0]+d}, v{A2+d}, v{A0+d}, vcc {DPP2}",
               f"v_mov_b32_dpp v{T+(2*d)%4}, v{A0+d} {DPP2}",
               f"v_mov_b32_dpp v{T+(2*d+1)%4}, v{R[1]+d} {DPP2}",
               f"v_cndmask_b32_dpp v{R[1]+d}, v{R[3]+d}, v{R[1]+d}, vcc {DPP2}",
               f"v_cndmask_b32_e64 v{R[2]+d}, v{T+(2*d)%4}, v{A2+d}, s[{sHI2}:{sHI2+1}]",
               f"v_cndmask_b32_e64 v{R[3]+d}, v{T+(2*d+1)%4}, v{R[3]+d}, s[{sHI2}:{sHI2+1}]"]
    return [f"s_mov_b64 vcc, s[{sEVEN}:{sEVEN+1}]"] + s1 + [f"s_mov_b64 vcc, s[{sLO2}:{sLO2+1}]"] + s2

def softmax(a, acc):
    KB = WF
    t = TT
    for i in range(8): a(f"v_cvt_pk_bf16_f32 v{KB+i}, v{acc+2*i}, v{acc+2*i+1}")
    a(f"v_cndmask_b32_e64 v{KB+6}, v{KB+6}, 0, s[{sHI32}:{sHI32+1}]")
    a(f"v_cndmask_b32_e64 v{KB+7}, v{KB+7}, 0, s[{sHI32}:{sHI32+1}]")
    a(f"v_mfma_f32_32x32x16_bf16 v[{P}:{P+15}], v[{WPH}:{WPH+3}], v[{KB}:{KB+3}], 0")
    a(f"v_mfma_f32_32x32x16_bf16 v[{P}:{P+15}], v[{WPH+4}:{WPH+7}], v[{KB+4}:{KB+7}], v[{P}:{P+15}]")
    PP, PM = KB+8, KB+12
    NI, PI_ = t, t+1
    a(f"v_mov_b32 v{NI}, 0xff800000\nv_mov_b32 v{PI_}, 0x7f800000")
    for i in range(4):
        a(f"v_cndmask_b32_e64 v{PP+i}, v{P+12+i}, v{NI}, s[{sHI32}:{sHI32+1}]")
        a(f"v_cndmask_b32_e64 v{PM+i}, v{P+12+i}, v{PI_}, s[{sHI32}:{sHI32+1}]")
    mx, mn, mx2, mn2 = t+2, t+4, t+6, t+7
    a(f"""v_max3_f32 v{mx}, v{P}, v{P+1}, v{P+2}
    v_min3_f32 v{mn}, v{P}, v{P+1}, v{P+2}
    v_max3_f32 v{mx2}, v{P+3}, v{P+4}, v{P+5}
    v_min3_f32 v{mn2}, v{P+3}, v{P+4}, v{P+5}
    v_max3_f32 v{mx}, v{mx}, v{P+6}, v{P+7}
    v_min3_f32 v{mn}, v{mn}, v{P+6}, v{P+7}
    v_max3_f32 v{mx2}, v{mx2}, v{P+8}, v{P+9}
    v_min3_f32 v{mn2}, v{mn2}, v{P+8}, v{P+9}
    v_max3_f32 v{mx}, v{mx}, v{P+10}, v{P+11}
    v_min3_f32 v{mn}, v{mn}, v{P+10}, v{P+11}
    v_max3_f32 v{mx2}, v{mx2}, v{PP}, v{PP+1}
    v_min3_f32 v{mn2}, v{mn2}, v{PM}, v{PM+1}
    v_max3_f32 v{mx}, v{mx}, v{PP+2}, v{PP+3}
    v_min3_f32 v{mn}, v{mn}, v{PM+2}, v{PM+3}
    v_max_f32 v{mx}, v{mx}, v{mx2}
    v_min_f32 v{mn}, v{mn}, v{mn2}
    v_mov_b32 v{mx2}, v{mx}
    v_mov_b32 v{mn2}, v{mn}
    v_permlane32_swap_b32 v{mx}, v{mx2}
    v_permlane32_swap_b32 v{mn}, v{mn2}
    v_max_f32 v{mx}, v{mx}, v{mx2}
    v_min_f32 v{mn}, v{mn}, v{mn2}
    v_mul_f32 v{mx}, 0xbfb8aa3b, v{mx}
    v_mul_f32 v{mn}, {LOG2E}, v{mn}""")
    sLp = f"s[{sL}:{sL+1}]"
    for i in range(0,16,2):
        sm = P+i if i<12 else PM+i-12
        sp_ = P+i if i<12 else PP+i-12
        a(f"v_pk_fma_f32 v[{EM+i}:{EM+i+1}], v[{sm}:{sm+1}], {sLp}, v[{mn}:{mn+1}] op_sel_hi:[1,1,0] neg_lo:[1,0,0] neg_hi:[1,0,0]")
        a(f"v_pk_fma_f32 v[{P+i}:{P+i+1}], v[{sp_}:{sp_+1}], {sLp}, v[{mx}:{mx+1}] op_sel_hi:[1,1,0]")
    for i in range(16):
        a(f"v_exp_f32 v{P+i}, v{P+i}")
        a(f"v_exp_f32 v{EM+i}, v{EM+i}")
    sP, sM = t+8, t+10
    a(f"v_pk_add_f32 v[{sP}:{sP+1}], v[{P}:{P+1}], v[{P+2}:{P+3}]")
    a(f"v_pk_add_f32 v[{sM}:{sM+1}], v[{EM}:{EM+1}], v[{EM+2}:{EM+3}]")
    for i in range(4,16,2):
        a(f"v_pk_add_f32 v[{sP}:{sP+1}], v[{sP}:{sP+1}], v[{P+i}:{P+i+1}]")
        a(f"v_pk_add_f32 v[{sM}:{sM+1}], v[{sM}:{sM+1}], v[{EM+i}:{EM+i+1}]")
    a(f"""v_add_f32 v{sP}, v{sP}, v{sP+1}
    v_add_f32 v{sM}, v{sM}, v{sM+1}
    v_mov_b32 v{sP+1}, v{sP}
    v_mov_b32 v{sM+1}, v{sM}
    v_permlane32_swap_b32 v{sP}, v{sP+1}
    v_permlane32_swap_b32 v{sM}, v{sM+1}
    v_add_f32 v{sP}, v{sP}, v{sP+1}
    v_add_f32 v{sM}, v{sM}, v{sM+1}
    v_rcp_f32 v{sP}, v{sP}
    v_rcp_f32 v{sM}, v{sM}""")
    for i in range(0,16,2):
        a(f"v_pk_mul_f32 v[{P+i}:{P+i+1}], v[{P+i}:{P+i+1}], v[{sP}:{sP+1}] op_sel_hi:[1,0]")
        a(f"v_pk_mul_f32 v[{EM+i}:{EM+i+1}], v[{EM+i}:{EM+i+1}], v[{sM}:{sM+1}] op_sel_hi:[1,0]")
    for i in range(8):
        a(f"v_cvt_pk_bf16_f32 v{F+i}, v{P+2*i}, v{P+2*i+1}")
        a(f"v_cvt_pk_bf16_f32 v{F+8+i}, v{EM+2*i}, v{EM+2*i+1}")

def flag_and_poll(a, tag, flag_off_code, poll_off_code, nflags, gate_reg=None, poll=True):
    a(f"s_cmp_eq_u32 s{sW}, 0\ns_cbranch_scc0 L_A_skip{tag}")
    if gate_reg is not None:
        a("s_mov_b32 s60, 0")
        a.label(f'L_A_gate{tag}')
        a(f"""v_readfirstlane_b32 s39, v{gate_reg}
        s_cmp_lg_u32 s39, 0
        s_cbranch_scc1 L_A_gateok{tag}
        s_add_u32 s60, s60, 1
        s_cmp_gt_u32 s60, {SPIN_MAX}
        s_cbranch_scc1 L_A_gateok{tag}
        s_sleep 1
        v_mov_b32 v3, 0
        global_load_dword v{gate_reg}, v3, {sp(S_DBG)} sc1
        s_waitcnt vmcnt(0)
        s_branch L_A_gate{tag}""")
        a.label(f'L_A_gateok{tag}')
    if flag_off_code:
        a(flag_off_code)
        a(f"""v_mov_b32 v2, s39
        v_mov_b32 v3, 1
        s_mov_b64 exec, 1
        global_store_dword v2, v3, {sp(S_WS)} sc1
        s_mov_b64 exec, -1""")
    if poll:
        a(poll_off_code)
        a(f"v_and_b32 v2, {nflags-1}, v1\nv_lshl_add_u32 v2, v2, 2, s39")
        a.label(f'L_A_poll{tag}')
        a(f"""global_load_dword v3, v2, {sp(S_WS)} sc1
        s_waitcnt vmcnt(0)
        v_cmp_ne_u32 vcc, 1, v3
        s_cmp_eq_u64 vcc, 0
        s_cbranch_scc1 L_A_skip{tag}
        s_add_u32 s60, s60, 1
        s_cmp_gt_u32 s60, {SPIN_MAX}
        s_cbranch_scc1 L_A_skip{tag}
        s_sleep 1
        s_branch L_A_poll{tag}""")
    a.label(f'L_A_skip{tag}')

def gen_A(a):
    vXO, vWK, vWQa, vWQb, vDM = 4, 5, 6, 7, 8
    a(f"""
    v_lshrrev_b32 v2, 6, v0
    v_and_b32 v1, 63, v0
    v_readfirstlane_b32 s{sW}, v2
    s_and_b32 s39, s2, 3
    s_lshl_b32 s39, s39, 2
    s_bfe_u32 s40, s2, 0x20003
    s_add_u32 s{sTB}, s39, s40
    s_bfe_u32 s39, s2, 0x10002
    s_lshl_b32 s39, s39, 3
    s_lshr_b32 s40, s2, 5
    s_add_u32 s{sH}, s39, s40
    s_and_b32 s{sCG}, s2, 3
    s_bfe_u32 s39, s2, 0x10002
    s_lshl_b32 s39, s39, 5
    s_lshr_b32 s40, s2, 3
    s_add_u32 s{sTT}, s39, s40
    s_lshl_b32 s39, s{sTB}, 7
    s_lshl_b32 s40, s{sW}, 5
    s_add_u32 s39, s39, s40
    s_mul_i32 s39, s39, 896
    v_bfe_u32 v2, v1, 2, 3
    v_mul_u32_u24 v2, {4*896}, v2
    v_lshrrev_b32 v3, 5, v1
    v_lshl_add_u32 v2, v3, 6, v2
    v_and_b32 v3, 3, v1
    v_lshl_add_u32 v2, v3, 4, v2
    v_add_u32 v{vXO}, s39, v2
    v_lshrrev_b32 v2, 5, v1
    v_bfe_u32 v3, v1, 2, 2
    v_lshl_add_u32 v2, v2, 2, v3
    v_mul_u32_u24 v2, 2688, v2
    v_bfe_u32 v3, v1, 4, 1
    v_mul_u32_u24 v3, 896, v3
    v_add_u32 v2, v2, v3
    v_and_b32 v3, 3, v1
    v_lshl_add_u32 v2, v3, 4, v2
    s_mul_i32 s41, s{sH}, 56
    s_add_u32 s39, s41, 896
    v_add_u32 v{vDM}, s39, v2
    s_waitcnt lgkmcnt(0)
    s_mov_b32 s{SRD_W}, s{S_WQKV}
    s_mov_b32 s{SRD_W+1}, s{S_WQKV+1}
    s_mov_b32 s{SRD_W+2}, {448*2688}
    s_mov_b32 s{SRD_W+3}, 0x00020000
    s_mul_i32 s42, s{sW}, 21504
    s_lshl_b32 m0, s{sW}, 10
    """)
    def xl(g):
        for i in range(4):
            a(f"global_load_dwordx4 v[{X+16*g+4*i}:{X+16*g+4*i+3}], v{vXO}, {sp(S_X)} offset:{i*896+128*g}")
    def wl(g):
        for k in range(2):
            a(f"buffer_load_dwordx4 v{vDM}, s[{SRD_W}:{SRD_W+3}], s42 offen lds")
            a(f"s_add_u32 m0, m0, 4096\ns_add_u32 s42, s42, 86016")
    xl(0); xl(1); wl(0)
    for g in range(2,7):
        xl(g); wl(g-1)
    wl(6)
    a(f"""
    v_lshrrev_b32 v2, 2, v1
    v_mul_u32_u24 v2, 2688, v2
    v_and_b32 v3, 3, v1
    v_lshl_add_u32 v2, v3, 4, v2
    v_add_u32 v9, s41, v2
    s_mul_i32 s43, s{sW}, 43008
    s_lshl_b32 s39, s{sW}, 10
    s_add_u32 m0, s39, {WQ}
    """)
    for i in range(6):
        a(f"s_nop 0\nbuffer_load_dwordx4 v9, s[{SRD_W}:{SRD_W+3}], s43 offen lds")
        a(f"s_add_u32 m0, m0, 4096\ns_add_u32 s43, s43, 172032")
    a(f"""
    s_mov_b32 s{sEVEN}, 0x55555555
    s_mov_b32 s{sEVEN+1}, 0x55555555
    s_mov_b32 s{sODD}, 0xaaaaaaaa
    s_mov_b32 s{sODD+1}, 0xaaaaaaaa
    s_mov_b32 s{sLO2}, 0x33333333
    s_mov_b32 s{sLO2+1}, 0x33333333
    s_mov_b32 s{sHI2}, 0xcccccccc
    s_mov_b32 s{sHI2+1}, 0xcccccccc
    s_mov_b32 s{sHI32}, 0
    s_mov_b32 s{sHI32+1}, -1
    s_mov_b32 s{sD28}, 0xf0000000
    s_mov_b32 s{sD28+1}, 0xf0000000
    s_mov_b32 s{sL}, {LOG2E}
    s_mov_b32 s{sL+1}, {LOG2E}
    s_mov_b32 s{sLOs}, 0x00003f80
    s_mov_b32 s{sHIs}, 0x3f800000
    s_mov_b32 s{SRD_P}, s{S_WPHI}
    s_mov_b32 s{SRD_P+1}, s{S_WPHI+1}
    s_mov_b32 s{SRD_P+2}, {16*1568}
    s_mov_b32 s{SRD_P+3}, 0x00020000
    s_mov_b32 s{SRD_O}, s{S_WO}
    s_mov_b32 s{SRD_O+1}, s{S_WO+1}
    s_mov_b32 s{SRD_O+2}, {448*896}
    s_mov_b32 s{SRD_O+3}, 0x00020000
    v_and_b32 v2, 15, v1
    v_lshrrev_b32 v3, 2, v2              ; i>>2
    v_and_b32 v2, 3, v2
    v_lshlrev_b32 v2, 3, v2              ; 8*(i&3)
    v_bfe_u32 v10, v1, 4, 1
    v_lshl_add_u32 v2, v10, 5, v2        ; + 32*(G&1)
    v_lshl_add_u32 v10, v3, 6, v2
    v_lshrrev_b32 v11, 5, v1             ; h2
    v_lshl_add_u32 v{vWK}, v11, 12, v10  ; W_kv: + 4096*h2
    v_lshl_add_u32 v{vWQb}, v11, 11, v10 ; W_q : + 64*32*h2
    v_add_u32 v{vWQa}, {WQ}, v{vWQb}
    v_lshl_add_u32 v12, v11, 2, v3
    v_mul_u32_u24 v12, 56, v12
    v_add_u32 v12, v12, v2
    v_add_u32 v12, {WPHI}, v12
    v_lshl_add_u32 v13, v11, 8, v10
    """)
    for i in range(16): a(f"v_mov_b32 v{ACCK+i}, 0\nv_mov_b32 v{ACCV+i}, 0")
    a(f"""
    v_and_b32 v2, 31, v1
    v_lshrrev_b32 v3, 4, v2
    v_lshlrev_b32 v3, 2, v3
    v_bfe_u32 v14, v2, 3, 1
    v_lshl_add_u32 v3, v14, 1, v3
    v_bfe_u32 v14, v2, 1, 1
    v_add_u32 v3, v3, v14                ; q*
    v_bfe_u32 v14, v2, 2, 1
    v_xor_b32 v14, v14, v11
    v_lshl_add_u32 v3, v14, 4, v3        ; q* + 16*mismatch
    v_and_b32 v14, 1, v2
    v_lshlrev_b32 v14, 4, v14
    v_mov_b32 v15, 0x3f80
    v_lshlrev_b32 v15, v14, v15          ; val
    """)
    for q in range(8):
        a(f"v_cmp_eq_u32 s[40:41], {q}, v3\nv_cndmask_b32_e64 v{IDN+q}, 0, v15, s[40:41]")
    def wreads(g, m, buf):
        o = WF + 8*buf
        for part in range(2):
            for u in range(2):
                a(f"ds_read_b64_tr_b16 v[{o+4*part+2*u}:{o+4*part+2*u+1}], v{vWK} offset:{512*(16*g+2*m+u)+256*part}")
    def mf(g, m, buf):
        o = WF + 8*buf; xr = X+16*g+4*m
        a(f"v_mfma_f32_32x32x16_bf16 v[{ACCK}:{ACCK+15}], v[{o}:{o+3}], v[{xr}:{xr+3}], v[{ACCK}:{ACCK+15}]")
        a(f"v_mfma_f32_32x32x16_bf16 v[{ACCV}:{ACCV+15}], v[{xr}:{xr+3}], v[{o+4}:{o+7}], v[{ACCV}:{ACCV+15}]")
    a("s_waitcnt vmcnt(44)")
    for t in transpose_ops(0): a(t)
    waits = [38, 32, 28, 22, 16, 10, 8]
    for g in range(7):
        a(f"s_waitcnt vmcnt({waits[g]})\ns_barrier")
        wreads(g, 0, 0); wreads(g, 1, 1)
        if g == 1:
            a(f"""s_lshl_b32 m0, s{sW}, 10
            s_nop 0
            buffer_load_dwordx4 v9, s[{SRD_W}:{SRD_W+3}], s43 offen lds
            s_and_b32 s39, s{sW}, 1
            s_lshl_b32 s39, s39, 10
            s_add_u32 m0, s39, {WPHI}
            s_mul_i32 s40, s{sH}, 1568
            s_add_u32 s40, s40, s39
            v_lshlrev_b32 v2, 4, v1
            buffer_load_dwordx4 v2, s[{SRD_P}:{SRD_P+3}], s40 offen lds""")
        tr = transpose_ops(g+1) if g < 6 else []
        k = 0
        def take(n):
            nonlocal k
            for _ in range(n):
                if k < len(tr): a(tr[k]); k += 1
        take(20)
        a("s_waitcnt lgkmcnt(4)"); mf(g, 0, 0); wreads(g, 2, 0); take(10)
        a("s_waitcnt lgkmcnt(4)"); mf(g, 1, 1); wreads(g, 3, 1); take(10)
        a("s_waitcnt lgkmcnt(4)"); mf(g, 2, 0); take(12)
        a("s_waitcnt lgkmcnt(0)"); mf(g, 3, 1)
        assert k == len(tr)
    a("s_waitcnt vmcnt(0)\ns_barrier")
    for st in range(2):
        for u in range(2):
            a(f"ds_read_b64_tr_b16 v[{WPH+4*st+2*u}:{WPH+4*st+2*u+1}], v12 offset:{56*(16*st+8*u)}")
    a("s_waitcnt lgkmcnt(0)")
    softmax(a, ACCK)
    VB = TT
    a(f"""v_and_b32 v2, 31, v1
    v_cmp_eq_u32 s[40:41], 28, v2
    v_mov_b32 v3, 0x3f803f80
    v_cndmask_b32_e64 v3, 0, v3, s[40:41]""")
    for i in range(8): a(f"v_cvt_pk_bf16_f32 v{VB+i}, v{ACCV+2*i}, v{ACCV+2*i+1}")
    for i in range(8): a(f"v_cndmask_b32_e64 v{VB+i}, v{VB+i}, v3, s[{sD28}:{sD28+1}]")
    for (dst, f0) in ((P, F), (EM, F+8)):
        a(f"v_mfma_f32_32x32x16_bf16 v[{dst}:{dst+15}], v[{f0}:{f0+3}], v[{IDN}:{IDN+3}], 0")
        a(f"v_mfma_f32_32x32x16_bf16 v[{dst}:{dst+15}], v[{f0+4}:{f0+7}], v[{IDN+4}:{IDN+7}], v[{dst}:{dst+15}]")
    AT = WF
    for i in range(8): a(f"v_cvt_pk_bf16_f32 v{AT+i}, v{P+2*i}, v{P+2*i+1}")
    for i in range(8): a(f"v_cvt_pk_bf16_f32 v{AT+8+i}, v{EM+2*i}, v{EM+2*i+1}")
    for (dst, a0) in ((P, AT), (EM, AT+8)):
        a(f"v_mfma_f32_32x32x16_bf16 v[{dst}:{dst+15}], v[{a0}:{a0+3}], v[{VB}:{VB+3}], 0")
        a(f"v_mfma_f32_32x32x16_bf16 v[{dst}:{dst+15}], v[{a0+4}:{a0+7}], v[{VB+4}:{VB+7}], v[{dst}:{dst+15}]")
    a(f"""s_lshl_b32 s39, s{sW}, 10
    s_add_u32 s39, s39, {RED}
    v_lshl_add_u32 v2, v1, 4, s39
    s_lshl_b32 s39, s{sW}, 12
    s_add_u32 s39, s39, {RED}
    v_lshl_add_u32 v3, v1, 4, s39""")
    for i in range(8): a(f"v_cvt_pk_bf16_f32 v{F+i}, v{P+2*i}, v{P+2*i+1}")
    for i in range(8): a(f"v_cvt_pk_bf16_f32 v{F+8+i}, v{EM+2*i}, v{EM+2*i+1}")
    for sg in range(4): a(f"ds_write_b128 v2, v[{F+4*sg}:{F+4*sg+3}] offset:{4096*sg}")
    a("s_waitcnt lgkmcnt(0)\ns_barrier")
    for src in range(4): a(f"ds_read_b128 v[{P+4*src}:{P+4*src+3}], v3 offset:{1024*src}")
    for i in range(8): a(f"v_mov_b32 v{EM+i}, 0")
    a(f"""s_lshl_b32 s39, s{sH}, 4
    s_add_u32 s39, s39, s{sTB}
    s_lshl_b32 s39, s39, 12
    s_lshl_b32 s40, s{sW}, 10
    s_add_u32 s39, s39, s40
    s_add_u32 s39, s39, {KVP}
    v_lshl_add_u32 v2, v1, 4, s39
    v_mov_b32 v3, 0
    s_waitcnt lgkmcnt(0)""")
    for src in range(4):
        for d in range(4):
            a(f"v_dot2c_f32_bf16 v{EM+2*d}, s{sLOs}, v{P+4*src+d}")
            a(f"v_dot2c_f32_bf16 v{EM+2*d+1}, s{sHIs}, v{P+4*src+d}")
    for d in range(4): a(f"v_cvt_pk_bf16_f32 v{F+d}, v{EM+2*d}, v{EM+2*d+1}")
    a(f"global_store_dwordx4 v2, v[{F}:{F+3}], {sp(S_WS)} sc1")
    a(f"global_load_dword v14, v3, {sp(S_DBG)} sc1")
    def qreads(g, m, buf):
        o = WF + 4*buf
        for u in range(2):
            if g < 6: a(f"ds_read_b64_tr_b16 v[{o+2*u}:{o+2*u+1}], v{vWQa} offset:{64*(64*g+8*m+4*u)}")
            else:     a(f"ds_read_b64_tr_b16 v[{o+2*u}:{o+2*u+1}], v{vWQb} offset:{WQ6+64*(8*m+4*u)}")
    steps = [(g,m) for g in range(7) for m in range(4)]
    for s in range(3): qreads(*steps[s], s)
    for s,(g,m) in enumerate(steps):
        rem = min(2, len(steps)-1-s)
        a(f"s_waitcnt lgkmcnt({2*rem})")
        o = WF + 4*(s%4); xr = X+16*g+4*m
        cin = '0' if s == 0 else f"v[{ACCK}:{ACCK+15}]"
        a(f"v_mfma_f32_32x32x16_bf16 v[{ACCK}:{ACCK+15}], v[{o}:{o+3}], v[{xr}:{xr+3}], {cin}")
        if s+3 < len(steps): qreads(*steps[s+3], (s+3)%4)
    a("s_waitcnt vmcnt(0)\ns_barrier")
    flag_and_poll(a, '1', f"""s_lshl_b32 s39, s{sH}, 7
        s_lshl_b32 s40, s{sTB}, 2
        s_add_u32 s39, s39, s40
        s_add_u32 s39, s39, {F1}""", None, 16, gate_reg=14, poll=False)
    a(f"""v_lshrrev_b32 v2, 2, v1
    v_mul_u32_u24 v2, 896, v2
    v_and_b32 v3, 3, v1
    v_lshl_add_u32 v2, v3, 4, v2
    s_mul_i32 s39, s{sCG}, 224
    s_mul_i32 s40, s{sW}, 56
    s_add_u32 s39, s39, s40
    v_add_u32 v9, s39, v2
    s_mul_i32 s44, s{sW}, {WOST}
    v_add_u32 v13, s44, v13
    s_mov_b32 m0, s44
    s_mov_b32 s42, 0""")
    for i in range(15):
        a(f"s_nop 0\nbuffer_load_dwordx4 v9, s[{SRD_O}:{SRD_O+3}], s42 offen lds")
        a(f"s_add_u32 m0, m0, 1024\ns_add_u32 s42, s42, 14336")
    softmax(a, ACCK)
    def woreads(rnd):
        n = 0
        for hd in range(8):
            for st in range(2):
                for u in range(2):
                    r0 = WO + 64*rnd + 8*hd + 4*st + 2*u
                    a(f"ds_read_b64_tr_b16 v[{r0}:{r0+1}], v13 offset:{64*(28*hd+16*st+8*u)}")
                    n += 1
                    if n % 12 == 0: a("s_waitcnt lgkmcnt(4)")
        a("s_waitcnt lgkmcnt(0)")
    a("s_waitcnt vmcnt(0)")
    woreads(0)
    flag_and_poll(a, '2', None, f"s_lshl_b32 s39, s{sH}, 7\ns_add_u32 s39, s39, {F1}", 16)
    a(f"""s_barrier
    s_lshl_b32 s39, s{sH}, 16
    s_lshl_b32 s40, s{sW}, 10
    s_add_u32 s39, s39, s40
    s_add_u32 s39, s39, {KVP}
    v_lshl_add_u32 v2, v1, 4, s39""")
    for p in range(16):
        if p == 0: a(f"global_load_dwordx4 v[{G}:{G+3}], v2, {sp(S_WS)} sc1")
        else:
            a(f"v_add_u32 v2, 4096, v2")
            a(f"global_load_dwordx4 v[{G+4*p}:{G+4*p+3}], v2, {sp(S_WS)} sc1")
    a(f"s_mov_b32 m0, s44\ns_mov_b32 s42, {14*14336}")
    for i in range(15):
        a(f"s_nop 0\nbuffer_load_dwordx4 v9, s[{SRD_O}:{SRD_O+3}], s42 offen lds")
        a(f"s_add_u32 m0, m0, 1024\ns_add_u32 s42, s42, 14336")
    for i in range(8): a(f"v_mov_b32 v{SUM+i}, 0")
    for b in range(4):
        a(f"s_waitcnt vmcnt({31-4*(b+1)})")
        for p in range(4*b, 4*b+4):
            for d in range(4):
                a(f"v_dot2c_f32_bf16 v{SUM+2*d}, s{sLOs}, v{G+4*p+d}")
                a(f"v_dot2c_f32_bf16 v{SUM+2*d+1}, s{sHIs}, v{G+4*p+d}")
    for d in range(4): a(f"v_cvt_pk_bf16_f32 v{G+d}, v{SUM+2*d}, v{SUM+2*d+1}")
    a(f"""s_lshl_b32 s39, s{sW}, 10
    s_add_u32 s39, s39, {EX}
    v_lshl_add_u32 v2, v1, 4, s39
    v_lshlrev_b32 v3, 4, v1
    ds_write_b128 v2, v[{G}:{G+3}]
    s_waitcnt lgkmcnt(0)
    s_barrier""")
    for sg in range(4): a(f"ds_read_b128 v[{KVF+4*sg}:{KVF+4*sg+3}], v3 offset:{EX+1024*sg}")
    a(f"""s_lshl_b32 s39, s{sTB}, 2
    s_add_u32 s39, s39, s{sW}
    s_lshl_b32 s39, s39, 4
    s_add_u32 s39, s39, s{sH}
    s_lshl_b32 s39, s39, 11
    s_add_u32 s39, s39, {OF}
    v_lshl_add_u32 v2, v1, 4, s39
    s_waitcnt lgkmcnt(0)""")
    for sg in range(4):
        cin = '0' if sg == 0 else f"v[{OA}:{OA+15}]"
        a(f"v_mfma_f32_32x32x16_bf16 v[{OA}:{OA+15}], v[{KVF+4*sg}:{KVF+4*sg+3}], v[{F+4*sg}:{F+4*sg+3}], {cin}")
    a(f"""v_mov_b32 v10, v{OA+12}
    v_mov_b32 v11, v{OA+12}
    v_permlane32_swap_b32 v10, v11
    v_add_f32 v10, 0x358637bd, v11
    v_rcp_f32 v10, v10""")
    for i in range(0,16,2): a(f"v_pk_mul_f32 v[{OA+i}:{OA+i+1}], v[{OA+i}:{OA+i+1}], v[10:11] op_sel_hi:[1,0]")
    for i in range(8): a(f"v_cvt_pk_bf16_f32 v{OB+i}, v{OA+2*i}, v{OA+2*i+1}")
    a(f"v_cndmask_b32_e64 v{OB+6}, v{OB+6}, 0, s[{sHI32}:{sHI32+1}]")
    a(f"v_cndmask_b32_e64 v{OB+7}, v{OB+7}, 0, s[{sHI32}:{sHI32+1}]")
    a(f"global_store_dwordx4 v2, v[{OB}:{OB+3}], {sp(S_WS)} sc1")
    a(f"global_store_dwordx4 v2, v[{OB+4}:{OB+7}], {sp(S_WS)} offset:1024 sc1")
    a("s_waitcnt vmcnt(2)")
    woreads(1)
    a("s_waitcnt vmcnt(0)\ns_barrier")
    flag_and_poll(a, '3', f"""s_lshl_b32 s39, s{sTB}, 7
        s_lshl_b32 s40, s{sH}, 2
        s_add_u32 s39, s39, s40
        s_add_u32 s39, s39, {F2}""",
        f"s_lshr_b32 s39, s{sTT}, 2\ns_lshl_b32 s39, s39, 7\ns_add_u32 s39, s39, {F2}", 16)
    OL = 176
    a(f"""s_barrier
    s_lshl_b32 s39, s{sTT}, 15
    s_lshl_b32 s40, s{sW}, 13
    s_add_u32 s39, s39, s40
    s_add_u32 s39, s39, {OF}
    v_lshl_add_u32 v2, v1, 4, s39
    v_add_u32 v3, 4096, v2""")
    for i in range(8):
        a(f"global_load_dwordx4 v[{OL+4*i}:{OL+4*i+3}], v{2 if i<4 else 3}, {sp(S_WS)} offset:{1024*(i%4)} sc1")
    a(f"""s_lshl_b32 s39, s{sW}, 13
    v_lshl_add_u32 v10, v1, 4, s39
    v_lshlrev_b32 v11, 4, v1""")
    for i in range(8):
        a(f"s_waitcnt vmcnt({7-i})\nds_write_b128 v10, v[{OL+4*i}:{OL+4*i+3}] offset:{OFR+1024*i}")
    a("s_waitcnt lgkmcnt(0)\ns_barrier")
    RB = 176
    for s in range(3): a(f"ds_read_b128 v[{RB+4*s}:{RB+4*s+3}], v11 offset:{OFR+1024*s}")
    for s in range(32):
        rem = min(2, 31-s)
        a(f"s_waitcnt lgkmcnt({rem})")
        cin = '0' if s == 0 else f"v[{FA}:{FA+15}]"
        a(f"v_mfma_f32_32x32x16_bf16 v[{FA}:{FA+15}], v[{WO+4*s}:{WO+4*s+3}], v[{RB+4*(s%4)}:{RB+4*(s%4)+3}], {cin}")
        if s+3 < 32: a(f"ds_read_b128 v[{RB+4*((s+3)%4)}:{RB+4*((s+3)%4)+3}], v11 offset:{OFR+1024*(s+3)}")
    a(f"""v_and_b32 v2, 31, v1
    v_mul_u32_u24 v2, {OUT_S}, v2
    v_lshrrev_b32 v3, 5, v1
    v_lshl_add_u32 v2, v3, 3, v2
    s_mul_i32 s39, s{sW}, 56
    s_add_u32 s39, s39, {OUTT}
    v_add_u32 v2, s39, v2
    ; reader: row = t/14, chunk = t%14
    v_mul_u32_u24 v4, 4682, v0
    v_lshrrev_b32 v4, 16, v4
    v_mul_u32_u24 v5, 14, v4
    v_sub_u32 v5, v0, v5
    v_mul_u32_u24 v6, {OUT_S}, v4
    v_lshl_add_u32 v6, v5, 4, v6
    v_add_u32 v6, {OUTT}, v6
    v_mul_u32_u24 v7, 1792, v4
    v_lshl_add_u32 v7, v5, 4, v7
    s_lshl_b32 s39, s{sTT}, 5
    s_mul_i32 s39, s39, 1792
    s_mul_i32 s40, s{sCG}, 224
    s_add_u32 s39, s39, s40
    v_add_u32 v7, s39, v7
    v_add_u32 v8, {16*1792}, v7""")
    for i in range(8): a(f"v_cvt_pk_bf16_f32 v{OB+i}, v{FA+2*i}, v{FA+2*i+1}")
    for g in range(3): a(f"ds_write_b64 v2, v[{OB+2*g}:{OB+2*g+1}] offset:{16*g}")
    a(f"""s_mov_b32 exec_hi, 0
    ds_write_b64 v2, v[{OB+6}:{OB+7}] offset:48
    s_mov_b32 exec_hi, -1
    s_waitcnt lgkmcnt(0)
    s_barrier
    v_cmp_gt_u32 vcc, 224, v0
    s_and_saveexec_b64 s[40:41], vcc
    s_cbranch_execz L_A_end
    ds_read_b128 v[{OA}:{OA+3}], v6
    ds_read_b128 v[{OA+4}:{OA+7}], v6 offset:{16*OUT_S}
    s_waitcnt lgkmcnt(0)
    global_store_dwordx4 v7, v[{OA}:{OA+3}], {sp(S_OUT)}
    global_store_dwordx4 v8, v[{OA+4}:{OA+7}], {sp(S_OUT)}""")
    a.label('L_A_end')
    a("s_endpgm")
```

```python
from layout import *
LOG2E = '0x3fb8aa3b'; NLOG2E = '0xbfb8aa3b'; INV2PI = '0x3e22f983'

ROW = 272
TBL = 64*ROW
U_OFF = 4*TBL
U_SZ = 4608
T0_OFF = U_OFF
T0_S = 160
R_SZ = 16640; R_CP = 4160
EXC = 40960
Y1_OFF = 0; Y1_S = 144
O1_OFF = 16384; O1_S = 144

def gen_B(a, dump=None):
    sBT,sG,sIDX,sW,sPI,sC,sCH = 32,33,34,35,36,37,38
    a(f"""
    s_sub_u32 s{sBT}, s2, {NA}
    s_lshr_b32 s{sG}, s{sBT}, 5
    s_and_b32 s{sIDX}, s{sBT}, 31
    v_lshrrev_b32 v2, 6, v0
    v_and_b32 v1, 63, v0
    v_readfirstlane_b32 s{sW}, v2
    s_lshl_b32 s39, s{sBT}, 2
    s_waitcnt lgkmcnt(0)
    s_load_dword s40, {sp(S_LOGDT)}, s39
    s_load_dword s41, {sp(S_DSK)}, s39
    s_and_b32 s{sPI}, s{sW}, 1
    s_lshr_b32 s{sC}, s{sW}, 1
    s_lshl_b32 s{sCH}, s{sBT}, 1
    s_add_u32 s{sCH}, s{sCH}, s{sC}
    s_lshl_b32 s39, s{sCH}, 9
    s_lshl_b32 s42, s{sPI}, 8
    s_add_u32 s39, s39, s42
    v_lshl_add_u32 v3, v1, 2, s39
    global_load_dword v20, v3, {sp(S_LOGA)}
    global_load_dword v21, v3, {sp(S_AIM)}
    global_load_dword v22, v3, {sp(S_CR)}
    global_load_dword v23, v3, {sp(S_CI)}
    s_mul_i32 s39, s{sIDX}, {64*896}
    s_lshl_b32 s42, s{sG}, 7
    s_add_u32 s39, s39, s42
    v_lshrrev_b32 v4, 3, v0
    v_and_b32 v5, 7, v0
    v_mul_u32_u24 v6, 896, v4
    v_lshl_add_u32 v6, v5, 4, v6
    v_add_u32 v6, s39, v6
    v_add_u32 v7, {32*896}, v6
    global_load_dwordx4 v[12:15], v6, {sp(S_U)}
    global_load_dwordx4 v[16:19], v7, {sp(S_U)}
    v_mul_u32_u24 v8, {T0_S}, v4
    v_lshl_add_u32 v8, v5, 4, v8
    v_add_u32 v8, {T0_OFF}, v8
    v_lshrrev_b32 v9, 4, v1          ; G
    v_and_b32 v10, 15, v1            ; i
    v_lshrrev_b32 v11, 2, v10
    v_lshl_add_u32 v11, v9, 3, v11   ; 8G + (i>>2)
    v_mul_u32_u24 v11, {T0_S}, v11
    v_and_b32 v24, 3, v10
    v_lshl_add_u32 v11, v24, 3, v11
    s_lshl_b32 s39, s{sW}, 5
    s_add_u32 s39, s39, {T0_OFF}
    v_add_u32 v11, s39, v11
    s_lshl_b32 s39, s{sG}, 18
    s_lshl_b32 s42, s{sIDX}, 13
    s_add_u32 s39, s39, s42
    s_lshl_b32 s42, s{sW}, 8
    s_add_u32 s39, s39, s42
    s_add_u32 s39, s39, {UT}
    v_lshlrev_b32 v24, 10, v9
    v_lshl_add_u32 v24, v10, 4, v24
    v_add_u32 v24, s39, v24
    v_add_u32 v25, 4096, v24
    ; dt, D
    s_waitcnt lgkmcnt(0)
    s_lshl_b32 s39, s{sC}, 4
    s_lshr_b32 s40, s40, s39
    s_lshl_b32 s40, s40, 16
    s_lshr_b32 s41, s41, s39
    s_lshl_b32 s41, s41, 16
    v_mov_b32 v26, s40
    v_mul_f32 v26, {LOG2E}, v26
    v_exp_f32 v26, v26
    v_cvt_pk_bf16_f32 v26, v26, v26
    v_lshlrev_b32 v26, 16, v26        ; dt
    v_add_f32 v27, v26, v26           ; 2*dt
    s_waitcnt vmcnt(0)
    ds_write_b128 v8, v[12:15]
    ds_write_b128 v8, v[16:19] offset:{32*T0_S}
    s_waitcnt lgkmcnt(0)
    s_barrier
    ds_read_b64_tr_b16 v[12:13], v11
    ds_read_b64_tr_b16 v[14:15], v11 offset:{4*T0_S}
    ds_read_b64_tr_b16 v[16:17], v11 offset:{32*T0_S}
    ds_read_b64_tr_b16 v[18:19], v11 offset:{36*T0_S}
    v_mov_b32 v28, 0
    s_waitcnt lgkmcnt(0)
    global_store_dwordx4 v24, v[12:15], {sp(S_WS)} sc1
    global_store_dwordx4 v25, v[16:19], {sp(S_WS)} sc1
    global_load_dword v29, v28, {sp(S_DBG)} sc1
    """)
    D0 = 32
    W1,W2,W4,W8,W256 = 48,50,52,54,56
    CUR1,CUR2,G,TM1,TM2 = 58,60,62,64,66
    PK1,PK2 = 68,69
    AL,BE = 70,71
    FA,FB = 72,88
    VT = 104
    a(f"""
    s_mul_i32 s39, s{sW}, {TBL}
    s_mov_b32 m0, s39
    v_and_b32 v2, 31, v1
    v_mul_u32_u24 v{VT}, {ROW}, v2
    v_lshrrev_b32 v2, 5, v1
    v_lshl_add_u32 v{VT}, v2, 4, v{VT}
    v_add_u32 v{VT}, s39, v{VT}
    s_mov_b32 s43, 0
    """)
    for i in range(16): a(f"v_mov_b32 v{D0+i}, 0")
    def cmul(dst, x, w, tmp):
        a(f"v_pk_mul_f32 v[{tmp}:{tmp+1}], v[{x}:{x+1}], v[{w}:{w+1}] op_sel_hi:[1,0]")
        a(f"v_pk_fma_f32 v[{dst}:{dst+1}], v[{x}:{x+1}], v[{w}:{w+1}], v[{tmp}:{tmp+1}] op_sel:[1,1,0] op_sel_hi:[0,1,1] neg_lo:[0,1,0]")
    a.label('L_B_chunk')
    a(f"""
    v_lshlrev_b32 v2, 16, v20
    v_lshlrev_b32 v3, 16, v21
    v_lshlrev_b32 v4, 16, v22
    v_lshlrev_b32 v5, 16, v23
    v_mul_f32 v2, {LOG2E}, v2
    v_lshrrev_b32 v20, 16, v20
    v_exp_f32 v2, v2
    v_lshrrev_b32 v21, 16, v21
    v_lshrrev_b32 v22, 16, v22
    v_cvt_pk_bf16_f32 v2, v2, v2
    v_lshrrev_b32 v23, 16, v23
    v_lshlrev_b32 v2, 16, v2
    v_mul_f32 v3, v3, v26
    v_mul_f32 v2, v2, v26
    v_mul_f32 v{BE}, {INV2PI}, v3
    v_mul_f32 v{AL}, {NLOG2E}, v2
    v_mul_f32 v{G}, v4, v27
    v_mul_f32 v{G+1}, v5, v27
    """)
    for (T,lit,W) in ((1,None,W1),(8,'0x41000000',W8),(256,'0x43800000',W256)):
        if lit is None:
            a(f"v_exp_f32 v2, v{AL}\nv_fract_f32 v3, v{BE}")
        else:
            a(f"v_mul_f32 v2, {lit}, v{AL}\nv_mul_f32 v3, {lit}, v{BE}\nv_exp_f32 v2, v2\nv_fract_f32 v3, v3")
        a(f"v_cos_f32 v4, v3\nv_sin_f32 v5, v3\nv_mul_f32 v{W}, v2, v4\nv_mul_f32 v{W+1}, v2, v5")
    cmul(W2, W1, W1, TM1)
    cmul(W4, W2, W2, TM1)
    e1 = []
    e1.append(('copyG', None, [0]))
    for r in range(1,8): e1.append(('cur', W1, [r]))
    e1.append(('G', W256, [8,9]))
    e1.append(('cur', W2, [10])); e1.append(('cur', W2, [11,12,13])); e1.append(('cur', W2, [14])); e1.append(('cur', W2, [15]))
    e1.append(('G', W256, [16])); e1.append(('cur', W4, [17])); e1.append(('cur', W4, [18]))
    e1.append(('G', W256, [20])); e1.append(('cur', W4, [21])); e1.append(('cur', W4, [22]))
    for b in range(4):
        e1.append(('G', W256, [24+2*b])); e1.append(('cur', W8, [25+2*b]))
    steps1 = []
    prevG = False
    for kind, mult, rows in e1:
        if kind == 'copyG':
            steps1.append(('pack', G, rows)); prevG = True
        elif kind == 'G':
            steps1.append(('mul', G, G, mult, rows)); prevG = True
        else:
            src = G if prevG else CUR1
            steps1.append(('mul', CUR1, src, mult, rows)); prevG = False
    steps2 = [('const1', None, [0]), ('pack', W8, [1])]
    steps2.append(('mul', CUR2, W8, W8, [2]))
    for j in range(3,32): steps2.append(('mul', CUR2, CUR2, W8, [j]))
    def emit_pair(s1, s2):
        seqs = []
        for s, tmp, pk, e in ((s1,TM1,PK1,1),(s2,TM2,PK2,2)):
            L = []
            if s is None: seqs.append(L); continue
            base = 32 if e==1 else 0
            neg = '-' if e==1 else ''
            if s[0]=='mul':
                _,dst,x,w,rows = s
                L.append(f"v_pk_mul_f32 v[{tmp}:{tmp+1}], v[{x}:{x+1}], v[{w}:{w+1}] op_sel_hi:[1,0]")
                L.append(f"v_pk_fma_f32 v[{dst}:{dst+1}], v[{x}:{x+1}], v[{w}:{w+1}], v[{tmp}:{tmp+1}] op_sel:[1,1,0] op_sel_hi:[0,1,1] neg_lo:[0,1,0]")
                L.append(f"v_cvt_pk_bf16_f32 v{pk}, v{dst}, {neg}v{dst+1}")
            elif s[0]=='pack':
                _,x,rows = s
                L.append(f"v_cvt_pk_bf16_f32 v{pk}, v{x}, {neg}v{x+1}")
            else:
                rows = s[2]
                L.append(f"v_mov_b32 v{pk}, 0x3f80")
            for r in rows: L.append(f"ds_write_addtid_b32 v{pk} offset:{(base+r)*ROW}")
            seqs.append(L)
        n = max(len(seqs[0]), len(seqs[1]))
        for i in range(n):
            for L in seqs:
                if i < len(L): a(L[i])
    n = max(len(steps1), len(steps2))
    for i in range(n):
        emit_pair(steps1[i] if i < len(steps1) else None, steps2[i] if i < len(steps2) else None)
    a("s_waitcnt lgkmcnt(0)")
    def rd(m, slot):
        a(f"ds_read_b128 v[{FA+4*slot}:{FA+4*slot+3}], v{VT} offset:{32*ROW+32*m}")
        a(f"ds_read_b128 v[{FB+4*slot}:{FB+4*slot+3}], v{VT} offset:{32*m}")
    for m in range(4): rd(m, m)
    for m in range(8):
        slot = m % 4
        pend = min(3-m if m<4 else 7-m, 3)
        issued = min(m+4, 8) if m>0 else 4
        a(f"s_waitcnt lgkmcnt({(issued-(m+1))*2})")
        a(f"v_mfma_f32_32x32x16_bf16 v[{D0}:{D0+15}], v[{FA+4*slot}:{FA+4*slot+3}], v[{FB+4*slot}:{FB+4*slot+3}], v[{D0}:{D0+15}]")
        if m+4 < 8: rd(m+4, slot)
    a(f"""
    s_add_u32 s43, s43, 1
    s_cmp_lt_u32 s43, 2
    s_cbranch_scc1 L_B_chunk
    """)
    a(f"""
    s_waitcnt vmcnt(0)
    s_barrier
    s_cmp_eq_u32 s{sW}, 0
    s_cbranch_scc0 L_B_nopub3
    """)
    a("s_mov_b32 s60, 0")
    a.label('L_B_gate')
    a(f"""
    v_readfirstlane_b32 s39, v29
    s_cmp_lg_u32 s39, 0
    s_cbranch_scc1 L_B_gateok
    s_add_u32 s60, s60, 1
    s_cmp_gt_u32 s60, {SPIN_MAX}
    s_cbranch_scc1 L_B_gateok
    s_sleep 1
    global_load_dword v29, v28, {sp(S_DBG)} sc1
    s_waitcnt vmcnt(0)
    s_branch L_B_gate
    """)
    a.label('L_B_gateok')
    a(f"""
    s_lshl_b32 s39, s{sG}, 7
    s_lshl_b32 s42, s{sIDX}, 2
    s_add_u32 s39, s39, s42
    s_add_u32 s39, s39, {F3}
    v_mov_b32 v2, s39
    v_mov_b32 v3, 1
    s_mov_b64 exec, 1
    global_store_dword v2, v3, {sp(S_WS)} sc1
    s_mov_b64 exec, -1
    ; poll F3[g][0..31]
    s_lshl_b32 s39, s{sG}, 7
    s_add_u32 s39, s39, {F3}
    v_and_b32 v2, 31, v1
    v_lshl_add_u32 v2, v2, 2, s39
    """)
    a.label('L_B_poll3')
    a(f"""
    global_load_dword v3, v2, {sp(S_WS)} sc1
    s_waitcnt vmcnt(0)
    v_cmp_ne_u32 vcc, 1, v3
    s_cmp_eq_u64 vcc, 0
    s_cbranch_scc1 L_B_nopub3
    s_add_u32 s60, s60, 1
    s_cmp_gt_u32 s60, {SPIN_MAX}
    s_cbranch_scc1 L_B_nopub3
    s_sleep 1
    s_branch L_B_poll3
    """)
    a.label('L_B_nopub3')
    SND = 72
    a(f"""
    s_mul_i32 s39, s{sW}, {TBL}
    v_lshl_add_u32 v2, v1, 4, s39
    s_xor_b32 s42, s{sW}, 1
    s_mul_i32 s42, s42, {TBL}
    v_lshl_add_u32 v3, v1, 4, s42
    s_cmp_eq_u32 s{sPI}, 0
    s_cbranch_scc0 L_B_snd1
    ds_write_b128 v2, v[{D0+8}:{D0+11}]
    ds_write_b128 v2, v[{D0+12}:{D0+15}] offset:1024
    s_branch L_B_snd2
    """)
    a.label('L_B_snd1')
    a(f"""
    ds_write_b128 v2, v[{D0}:{D0+3}]
    ds_write_b128 v2, v[{D0+4}:{D0+7}] offset:1024
    """)
    a.label('L_B_snd2')
    a(f"""
    s_waitcnt lgkmcnt(0)
    s_barrier
    v_lshrrev_b32 v4, 1, v0               ; P (0..127)
    v_and_b32 v5, 1, v0                   ; cc
    s_lshl_b32 s39, s{sG}, 18
    s_lshl_b32 s42, s{sIDX}, 5
    s_add_u32 s39, s39, s42
    s_add_u32 s39, s39, {UT}
    v_lshlrev_b32 v6, 10, v4
    v_lshl_add_u32 v6, v5, 4, v6
    v_add_u32 v6, s39, v6
    v_add_u32 v7, {128*1024}, v6
    global_load_dwordx4 v[12:15], v6, {sp(S_WS)} sc1
    global_load_dwordx4 v[16:19], v7, {sp(S_WS)} sc1
    ds_read_b128 v[{SND}:{SND+3}], v3
    ds_read_b128 v[{SND+4}:{SND+7}], v3 offset:1024
    v_mul_u32_u24 v8, {U_SZ}, v5
    v_lshl_add_u32 v8, v4, 4, v8
    v_add_u32 v8, {U_OFF+480}, v8
    s_mul_i32 s44, s{sC}, {R_SZ}
    v_and_b32 v9, 31, v1                  ; j
    v_lshrrev_b32 v10, 5, v1              ; h
    s_waitcnt lgkmcnt(0)
    s_barrier
    s_cmp_eq_u32 s{sPI}, 0
    s_cbranch_scc0 L_B_exp1
    """)
    S = SND
    for i in range(8): a(f"v_add_f32 v{S+i}, v{S+i}, v{D0+i}")
    a(f"""
    ; x0 = 2044 - 8j - 4h  -> byte 2*x0
    v_lshlrev_b32 v2, 4, v9
    v_lshl_add_u32 v2, v10, 3, v2
    v_sub_u32 v2, {2*2044}, v2
    v_add_u32 v2, s44, v2
    v_cvt_pk_bf16_f32 v80, v{S+3}, v{S+2}
    v_cvt_pk_bf16_f32 v81, v{S+1}, v{S+0}
    v_cvt_pk_bf16_f32 v82, v{S+7}, v{S+6}
    v_cvt_pk_bf16_f32 v83, v{S+5}, v{S+4}
    v_add_u32 v3, {-512 & 0xffffffff}, v2
    ds_write_b64 v2, v[80:81]
    ds_write_b64 v3, v[82:83]
    v_lshrrev_b32 v4, 2, v1
    v_mul_u32_u24 v4, {R_CP}, v4
    v_and_b32 v5, 3, v1
    v_lshl_add_u32 v4, v5, 4, v4
    v_add_u32 v4, s44, v4
    v_mov_b32 v84, 0
    v_mov_b32 v85, 0
    v_mov_b32 v86, 0
    v_mov_b32 v87, 0
    s_mov_b64 exec, 0xffff
    ds_write_b128 v4, v[84:87] offset:4096
    s_mov_b64 exec, -1
    s_mul_i32 s39, s{sC}, {U_SZ}
    s_add_u32 s39, s39, {U_OFF}
    v_lshl_add_u32 v4, v1, 4, s39
    s_mov_b64 exec, 0x3fffffff
    ds_write_b128 v4, v[84:87]
    s_mov_b64 exec, -1
    s_branch L_B_exp2
    """)
    a.label('L_B_exp1')
    for i in range(8): a(f"v_add_f32 v{S+i}, v{S+i}, v{D0+8+i}")
    a(f"""
    v_lshlrev_b32 v2, 4, v9
    v_lshl_add_u32 v2, v10, 9, v2
    v_sub_u32 v2, {2*(2040-512)}, v2
    v_add_u32 v2, s44, v2
    v_cvt_pk_bf16_f32 v80, v{S+2}, v{S+2}
    v_cvt_pk_bf16_f32 v81, v{S+1}, v{S+1}
    v_cvt_pk_bf16_f32 v82, v{S+1}, v{S+0}
    v_cvt_pk_bf16_f32 v83, v{S+0}, v{S+0}
    ds_write_b128 v2, v[80:83]
    v_lshlrev_b32 v3, 4, v9
    v_lshl_add_u32 v3, v10, 10, v3
    v_sub_u32 v3, {2*(2040-1024)}, v3
    v_add_u32 v3, s44, v3
    v_add_u32 v4, {-512 & 0xffffffff}, v3
    s_mov_b32 s46, 0xaaaaaaaa
    s_mov_b32 s47, 0xaaaaaaaa
    v_cndmask_b32_e64 v5, v{S+4}, v{S+5}, s[46:47]
    v_cndmask_b32_e64 v6, v{S+6}, v{S+7}, s[46:47]
    v_cvt_pk_bf16_f32 v84, v{S+5}, v{S+5}
    v_cvt_pk_bf16_f32 v85, v{S+5}, v5
    v_cvt_pk_bf16_f32 v86, v{S+4}, v{S+4}
    v_cvt_pk_bf16_f32 v87, v{S+4}, v{S+4}
    v_cvt_pk_bf16_f32 v88, v{S+7}, v{S+7}
    v_cvt_pk_bf16_f32 v89, v{S+7}, v6
    v_cvt_pk_bf16_f32 v90, v{S+6}, v{S+6}
    v_cvt_pk_bf16_f32 v91, v{S+6}, v{S+6}
    ds_write_b128 v3, v[84:87]
    ds_write_b128 v4, v[88:91]
    """)
    a.label('L_B_exp2')
    a(f"""
    s_waitcnt vmcnt(0)
    ds_write_b128 v8, v[12:15]
    ds_write_b128 v8, v[16:19] offset:{128*16}
    s_waitcnt lgkmcnt(0)
    s_barrier
    s_lshl_b32 s39, s{sPI}, 11
    s_add_u32 s39, s39, s44
    v_lshl_add_u32 v2, v1, 4, s39
    ds_read_b128 v[72:75], v2
    ds_read_b64 v[76:77], v2 offset:16
    ds_read_b128 v[80:83], v2 offset:1024
    ds_read_b64 v[84:85], v2 offset:1040
    """)
    for rho,(d) in enumerate((72,80)):
        o = 88 if rho==0 else 100
        a(f"s_waitcnt lgkmcnt({2 if rho==0 else 3})")
        for i in range(4): a(f"v_alignbit_b32 v{o+i}, v{d+i+1}, v{d+i}, 16")
        for i in range(4): a(f"v_mov_b32 v{o+4+i}, v{d+i+1}")
        for i in range(4): a(f"v_alignbit_b32 v{o+8+i}, v{d+i+2}, v{d+i+1}, 16")
        for cp in range(3):
            a(f"ds_write_b128 v2, v[{o+4*cp}:{o+4*cp+3}] offset:{(cp+1)*R_CP + 1024*rho}")
    ACC = 32
    AB = (64, 96)
    BB = (128, 160)
    VA, VB = 192, 193
    a(f"""
    v_and_b32 v2, 15, v1
    v_lshrrev_b32 v3, 4, v1
    v_sub_u32 v4, 3, v2
    v_and_b32 v4, 3, v4                  ; rho
    v_lshlrev_b32 v5, 3, v3
    v_sub_u32 v5, v5, v2
    v_add_u32 v5, 15, v5
    v_sub_u32 v5, v5, v4
    v_lshlrev_b32 v5, 1, v5
    v_mul_u32_u24 v4, {R_CP}, v4
    v_add_u32 v5, v5, v4
    s_lshl_b32 s39, s{sPI}, 8            ; 64 * 4*pi
    s_add_u32 s42, s39, s44
    v_add_u32 v{VA}, s42, v5
    ; B address: U + 2*(16j + 8h) + 64*r0
    v_lshlrev_b32 v5, 5, v2
    v_lshl_add_u32 v5, v3, 4, v5
    s_mul_i32 s42, s{sC}, {U_SZ}
    s_add_u32 s42, s42, {U_OFF}
    s_add_u32 s39, s39, s42
    v_add_u32 v{VB}, s39, v5
    s_waitcnt lgkmcnt(0)
    s_barrier
    """)
    def loads(r, buf):
        L = []
        for q in range(8):
            L.append(f"ds_read_b128 v[{BB[buf]+4*q}:{BB[buf]+4*q+3}], v{VB} offset:{512*q+64*r}")
            d = q
            off = 3584 - 512*d + 64*r
            L.append(f"ds_read_b64 v[{AB[buf]+4*d}:{AB[buf]+4*d+1}], v{VA} offset:{off}")
            L.append(f"ds_read_b64 v[{AB[buf]+4*d+2}:{AB[buf]+4*d+3}], v{VA} offset:{off+8}")
        return L
    L0 = loads(0, 0)
    for i,x in enumerate(L0):
        a(x)
        if i % 12 == 11: a("s_waitcnt lgkmcnt(0)")
    a("s_waitcnt lgkmcnt(0)")
    for r in range(4):
        buf = r & 1
        nxt = loads(r+1, buf^1) if r < 3 else []
        k = 0
        for q in range(8):
            for t in range(q, 8):
                c = f"v[{ACC+4*t}:{ACC+4*t+3}]"
                cin = '0' if (r == 0 and q == 0) else c
                a(f"v_mfma_f32_16x16x32_bf16 {c}, v[{AB[buf]+4*(t-q)}:{AB[buf]+4*(t-q)+3}], v[{BB[buf]+4*q}:{BB[buf]+4*q+3}], {cin}")
                if k < len(nxt): a(nxt[k]); k += 1
        if r < 3: a("s_waitcnt lgkmcnt(0)")
    RX = 64
    a(f"""
    s_lshl_b32 s39, s{sW}, 12
    s_add_u32 s39, s39, {EXC}
    v_lshl_add_u32 v2, v1, 4, s39
    s_xor_b32 s42, s{sW}, 1
    s_lshl_b32 s42, s42, 12
    s_add_u32 s42, s42, {EXC}
    v_lshl_add_u32 v3, v1, 4, s42
    v_and_b32 v4, 15, v1
    v_lshrrev_b32 v5, 4, v1
    v_lshlrev_b32 v6, 5, v4
    v_lshl_add_u32 v6, v5, 3, v6
    s_mul_i32 s42, s{sC}, {U_SZ}
    s_lshl_b32 s39, s{sPI}, 11
    s_add_u32 s42, s42, s39
    s_add_u32 s42, s42, {U_OFF+480}
    v_add_u32 v6, s42, v6
    ds_read_b64 v[96:97], v6
    ds_read_b64 v[98:99], v6 offset:512
    ds_read_b64 v[100:101], v6 offset:1024
    ds_read_b64 v[102:103], v6 offset:1536
    s_cmp_eq_u32 s{sPI}, 0
    s_cbranch_scc0 L_B_ce1
    """)
    for i in range(4): a(f"ds_write_b128 v2, v[{ACC+16+4*i}:{ACC+16+4*i+3}] offset:{1024*i}")
    a("s_branch L_B_ce2")
    a.label('L_B_ce1')
    for i in range(4): a(f"ds_write_b128 v2, v[{ACC+4*i}:{ACC+4*i+3}] offset:{1024*i}")
    for i in range(16): a(f"v_mov_b32 v{ACC+i}, v{ACC+16+i}")
    a.label('L_B_ce2')
    a(f"""
    s_waitcnt lgkmcnt(0)
    s_barrier
    """)
    for i in range(4): a(f"ds_read_b128 v[{RX+4*i}:{RX+4*i+3}], v3 offset:{1024*i}")
    a(f"""
    v_mov_b32 v7, s41
    s_mov_b32 s46, 0xffff0000
    s_lshl_b32 s39, s{sCH}, 12
    s_lshl_b32 s42, s{sPI}, 11
    s_add_u32 s39, s39, s42
    s_add_u32 s39, s39, {YT}
    v_and_b32 v8, 1, v5
    v_lshlrev_b32 v8, 9, v8
    v_lshrrev_b32 v9, 1, v5
    v_lshl_add_u32 v8, v9, 8, v8
    v_lshl_add_u32 v8, v4, 4, v8
    v_add_u32 v8, s39, v8
    s_waitcnt lgkmcnt(0)
    """)
    for i in range(4):
        u = 96+2*i
        a(f"""
        v_lshlrev_b32 v10, 16, v{u}
        v_and_b32 v11, s46, v{u}
        v_lshlrev_b32 v12, 16, v{u+1}
        v_and_b32 v13, s46, v{u+1}
        v_add_f32 v{RX+4*i}, v{RX+4*i}, v{ACC+4*i}
        v_add_f32 v{RX+4*i+1}, v{RX+4*i+1}, v{ACC+4*i+1}
        v_add_f32 v{RX+4*i+2}, v{RX+4*i+2}, v{ACC+4*i+2}
        v_add_f32 v{RX+4*i+3}, v{RX+4*i+3}, v{ACC+4*i+3}
        v_fmac_f32 v{RX+4*i}, v7, v10
        v_fmac_f32 v{RX+4*i+1}, v7, v11
        v_fmac_f32 v{RX+4*i+2}, v7, v12
        v_fmac_f32 v{RX+4*i+3}, v7, v13
        v_cvt_pk_bf16_f32 v{112+2*i}, v{RX+4*i}, v{RX+4*i+1}
        v_cvt_pk_bf16_f32 v{112+2*i+1}, v{RX+4*i+2}, v{RX+4*i+3}
        """)
    a(f"""
    v_permlane16_swap_b32 v112, v114
    v_permlane16_swap_b32 v113, v115
    v_permlane16_swap_b32 v116, v118
    v_permlane16_swap_b32 v117, v119
    global_store_dwordx4 v8, v[112:115], {sp(S_WS)} sc1
    global_store_dwordx4 v8, v[116:119], {sp(S_WS)} offset:1024 sc1
    v_lshrrev_b32 v2, 2, v0
    v_and_b32 v3, 3, v0
    s_lshl_b32 s39, s{sG}, 18
    s_lshr_b32 s42, s{sIDX}, 2
    s_lshl_b32 s42, s42, 9
    s_add_u32 s39, s39, s42
    s_and_b32 s42, s{sIDX}, 3
    s_lshl_b32 s42, s42, 6
    s_add_u32 s39, s39, s42
    s_add_u32 s39, s39, {YT}
    v_lshlrev_b32 v6, 12, v2
    v_lshl_add_u32 v6, v3, 4, v6
    v_add_u32 v6, s39, v6
    v_mul_u32_u24 v7, {Y1_S}, v2
    v_lshl_add_u32 v7, v3, 5, v7
    v_add_u32 v7, {Y1_OFF}, v7
    s_waitcnt vmcnt(0)
    s_barrier
    s_cmp_eq_u32 s{sW}, 0
    s_cbranch_scc0 L_B_nopub4
    s_lshl_b32 s39, s{sG}, 7
    s_lshl_b32 s42, s{sIDX}, 2
    s_add_u32 s39, s39, s42
    s_add_u32 s39, s39, {F4}
    v_mov_b32 v10, s39
    v_mov_b32 v11, 1
    s_mov_b64 exec, 1
    global_store_dword v10, v11, {sp(S_WS)} sc1
    s_mov_b64 exec, -1
    s_lshl_b32 s39, s{sG}, 7
    s_add_u32 s39, s39, {F4}
    v_and_b32 v10, 31, v1
    v_lshl_add_u32 v10, v10, 2, s39
    """)
    a.label('L_B_poll4')
    a(f"""
    global_load_dword v11, v10, {sp(S_WS)} sc1
    s_waitcnt vmcnt(0)
    v_cmp_ne_u32 vcc, 1, v11
    s_cmp_eq_u64 vcc, 0
    s_cbranch_scc1 L_B_nopub4
    s_add_u32 s60, s60, 1
    s_cmp_gt_u32 s60, {SPIN_MAX}
    s_cbranch_scc1 L_B_nopub4
    s_sleep 1
    s_branch L_B_poll4
    """)
    a.label('L_B_nopub4')
    a(f"""
    s_barrier
    global_load_dwordx4 v[12:15], v6, {sp(S_WS)} sc1
    global_load_dwordx4 v[16:19], v6, {sp(S_WS)} offset:256 sc1
    v_lshrrev_b32 v9, 4, v1
    v_and_b32 v10, 15, v1
    v_lshrrev_b32 v11, 2, v10
    v_lshl_add_u32 v11, v9, 3, v11
    v_mul_u32_u24 v11, {Y1_S}, v11
    v_and_b32 v24, 3, v10
    v_lshl_add_u32 v11, v24, 3, v11
    s_lshl_b32 s39, s{sW}, 5
    s_add_u32 s39, s39, {Y1_OFF}
    v_add_u32 v11, s39, v11
    s_mul_i32 s39, s{sW}, {16*O1_S}
    s_add_u32 s39, s39, {O1_OFF}
    v_mul_u32_u24 v24, {O1_S}, v10
    v_lshl_add_u32 v24, v9, 4, v24
    v_add_u32 v24, s39, v24
    v_lshrrev_b32 v25, 3, v1
    v_and_b32 v26, 7, v1
    v_mul_u32_u24 v27, {O1_S}, v25
    v_lshl_add_u32 v27, v26, 4, v27
    v_add_u32 v27, s39, v27
    s_lshl_b32 s39, s{sIDX}, 6
    s_lshl_b32 s42, s{sW}, 4
    s_add_u32 s39, s39, s42
    s_mul_i32 s39, s39, 1792
    s_lshl_b32 s42, s{sG}, 7
    s_add_u32 s39, s39, s42
    s_add_u32 s39, s39, 896
    v_mul_u32_u24 v28, 1792, v25
    v_lshl_add_u32 v28, v26, 4, v28
    v_add_u32 v28, s39, v28
    v_add_u32 v29, {8*1792}, v28
    s_waitcnt vmcnt(0)
    ds_write_b128 v7, v[12:15]
    ds_write_b128 v7, v[16:19] offset:16
    s_waitcnt lgkmcnt(0)
    s_barrier
    ds_read_b64_tr_b16 v[12:13], v11
    ds_read_b64_tr_b16 v[14:15], v11 offset:{4*Y1_S}
    ds_read_b64_tr_b16 v[16:17], v11 offset:{32*Y1_S}
    ds_read_b64_tr_b16 v[18:19], v11 offset:{36*Y1_S}
    s_waitcnt lgkmcnt(0)
    ds_write_b128 v24, v[12:15]
    ds_write_b128 v24, v[16:19] offset:64
    s_waitcnt lgkmcnt(0)
    ds_read_b128 v[12:15], v27
    ds_read_b128 v[16:19], v27 offset:{8*O1_S}
    s_waitcnt lgkmcnt(0)
    global_store_dwordx4 v28, v[12:15], {sp(S_OUT)}
    global_store_dwordx4 v29, v[16:19], {sp(S_OUT)}
    s_endpgm
    """)

def gen_ctrl(a):
    a(f"""
    s_waitcnt lgkmcnt(0)
    v_lshlrev_b32 v1, 5, v0
    v_mov_b32 v4, 0
    v_mov_b32 v5, 0
    v_mov_b32 v6, 0
    v_mov_b32 v7, 0
    global_store_dwordx4 v1, v[4:7], {sp(S_WS)} sc1
    global_store_dwordx4 v1, v[4:7], {sp(S_WS)} offset:16 sc1
    s_waitcnt vmcnt(0)
    s_barrier
    v_mov_b32 v2, 0
    v_mov_b32 v3, 1
    v_cmp_eq_u32 vcc, 0, v0
    s_and_saveexec_b64 s[40:41], vcc
    s_cbranch_execz L_ctrl_end
    global_store_dword v2, v3, {sp(S_DBG)} sc1
    """)
    a.label('L_ctrl_end')
    a("s_endpgm")
```

```python
import sys; sys.path.insert(0,'gen')
from common import *
from layout import *
import progB
try:
    import progA
except ImportError:
    progA = None
NAME = 'concat_heads__linear_kernel_hedgehog__ssm_conv_s4d__prompt_kernel'
HEAD = open('concat_heads__linear_kernel_hedgehog__ssm_conv_s4d__prompt.s.ref').read().split('; Override launch')[0]

def build(withA=True, withB=True, out='k.s', **kw):
    a = Asm()
    a(f"""
    s_cmp_gt_u32 s2, {CTRL}
    s_cbranch_scc1 L_exit
    s_load_dwordx16 s[4:19], s[0:1], 0
    s_load_dwordx8 s[20:27], s[0:1], 64
    s_load_dwordx4 s[28:31], s[0:1], 96
    s_cmp_eq_u32 s2, {CTRL}
    s_cbranch_scc1 L_ctrl
    s_cmp_ge_u32 s2, {NA}
    s_cbranch_scc1 L_B
    """)
    if withA and progA: progA.gen_A(a, **kw)
    else: a("s_endpgm")
    a.label('L_B')
    if withB: progB.gen_B(a)
    else: a("s_endpgm")
    a.label('L_ctrl')
    progB.gen_ctrl(a)
    a.label('L_exit')
    a("s_endpgm")
    body = a.finalize()
    src = HEAD + f"; @launch grid=({GRID},1,1) block=(256,1,1) lds={LDS_BYTES}\n" + HDR_TARGET + kernel_wrap(NAME, body, 256, 102)
    open(out,'w').write(src)
    return src

if __name__ == '__main__':
    import argparse
    p = argparse.ArgumentParser()
    p.add_argument('--noA', action='store_true'); p.add_argument('--noB', action='store_true'); p.add_argument('-o', default='k.s')
    args = p.parse_args()
    build(not args.noA, not args.noB, args.o)
```

```python
import re

TRANS = ('v_exp_f32','v_log_f32','v_rcp_f32','v_rsq_f32','v_sqrt_f32','v_sin_f32','v_cos_f32','v_rcp_iflag_f32')

def _regs(tok):
    tok = tok.strip()
    neg = tok.startswith('-')
    if neg: tok = tok[1:]
    m = re.fullmatch(r'abs\((.*)\)', tok)
    if m: tok = m.group(1)
    m = re.fullmatch(r'\|(.*)\|', tok)
    if m: tok = m.group(1)
    m = re.fullmatch(r'([vsa])(\d+)', tok)
    if m: return [(m.group(1), int(m.group(2)))]
    m = re.fullmatch(r'([vsa])\[(\d+):(\d+)\]', tok)
    if m: return [(m.group(1), i) for i in range(int(m.group(2)), int(m.group(3))+1)]
    if tok == 'vcc': return [('s','vcc_lo'),('s','vcc_hi')]
    if tok in ('vcc_lo','vcc_hi','m0','scc'): return [('s',tok)]
    if tok == 'exec': return [('s','exec_lo'),('s','exec_hi')]
    if tok in ('exec_lo','exec_hi'): return [('s',tok)]
    return []

class Ins:
    __slots__ = ('text','op','ops','vr','vw','sr','sw','kind','passes','dpp','label','target','srcc','states','mods')
    def __init__(self, text):
        self.text = text
        self.label = None; self.target = None
        self.vr=set(); self.vw=set(); self.sr=set(); self.sw=set(); self.srcc=set()
        self.kind='other'; self.passes=0; self.dpp=False; self.states=1
        t = text.split(';')[0].strip()
        if t.endswith(':') and ' ' not in t:
            self.label = t[:-1]; self.kind='label'; self.op=''; self.states=0; return
        if t.startswith('.') or t == '':
            self.kind='directive'; self.op=''; self.states=0; return
        parts = t.split(None,1)
        op = parts[0]; self.op = op
        rest = parts[1] if len(parts)>1 else ''
        ops=[]; cur=''; depth=0
        for ch in rest:
            if ch in '[(': depth+=1
            if ch in '])': depth-=1
            if ch==',' and depth==0: ops.append(cur.strip()); cur=''
            else: cur+=ch
        if cur.strip(): ops.append(cur.strip())
        mods=''
        if ops:
            last = ops[-1]
            sp = last.split(None,1)
            ops[-1]=sp[0]
            if len(sp)>1: mods=sp[1]
        self.ops=ops; self.mods=mods
        R=lambda i: _regs(ops[i]) if i < len(ops) else []
        def rd(lst):
            for k,n in lst:
                (self.vr if k in 'va' else self.sr).add(n)
        def wr(lst):
            for k,n in lst:
                (self.vw if k in 'va' else self.sw).add(n)
        base = op
        for suf in ('_e32','_e64','_dpp','_sdwa'):
            if base.endswith(suf): base = base[:-len(suf)]
        if op.endswith('_dpp') or 'quad_perm' in mods or 'row_' in mods or 'wave_' in mods: self.dpp=True
        if base == 's_nop':
            self.kind='nop'; self.states=int(ops[0],0)+1; return
        if base in ('s_branch','s_cbranch_scc0','s_cbranch_scc1','s_cbranch_vccz','s_cbranch_vccnz','s_cbranch_execz','s_cbranch_execnz'):
            self.kind='branch'; self.target=ops[0]; return
        if base.startswith('v_mfma'):
            self.kind='mfma'
            self.passes = 8 if '32x32' in base else 4
            wr(R(0)); rd(R(1)); rd(R(2)); rd(R(3))
            self.srcc=set(n for k,n in R(3))
            return
        if base.startswith('v_'):
            self.kind='valu'
            if base in TRANS: self.kind='trans'
            if base.startswith('v_cmp'):
                wr(R(0));
                for i in range(1,len(ops)): rd(R(i))
                if base.startswith('v_cmpx'): wr(_regs('exec'))
                return
            if base in ('v_readfirstlane_b32','v_readlane_b32'):
                self.kind='readlane'
                wr(R(0)); rd(R(1)); rd(R(2)); return
            if base == 'v_writelane_b32':
                wr(R(0)); rd(R(0)); rd(R(1)); rd(R(2)); self.kind='writelane'; return
            if base.startswith('v_permlane'):
                self.kind='permlane'
                wr(R(0)); wr(R(1)); rd(R(0)); rd(R(1)); return
            if base in ('v_add_co_u32','v_sub_co_u32','v_subrev_co_u32'):
                wr(R(0)); wr(R(1)); rd(R(2)); rd(R(3)); return
            if base in ('v_addc_co_u32','v_subb_co_u32'):
                wr(R(0)); wr(R(1)); rd(R(2)); rd(R(3)); rd(R(4)); return
            wr(R(0))
            for i in range(1,len(ops)): rd(R(i))
            if base in ('v_fmac_f32','v_dot2c_f32_bf16','v_pk_fmac_f16','v_mac_f32'): rd(R(0))
            if self.dpp: rd(R(0))
            if base == 'v_cndmask_b32' and len(ops)==3: rd(_regs('vcc'))
            return
        if base.startswith('ds_'):
            self.kind='ds'
            if base.startswith('ds_read') or base.startswith('ds_bpermute') or base.startswith('ds_permute') or base.startswith('ds_swizzle'):
                wr(R(0))
                for i in range(1,len(ops)): rd(R(i))
                if 'addtid' in base: rd([('s','m0')])
            else:
                for i in range(len(ops)): rd(R(i))
                if 'addtid' in base: rd([('s','m0')])
                if 'rtn' in base: wr(R(0))
            return
        if base.startswith('buffer_') or base.startswith('global_'):
            self.kind='vmem'
            islds = (' lds' in (' '+mods)) or '_lds_' in base
            if base in ('buffer_inv','buffer_wbl2'): return
            if islds:
                for i in range(len(ops)): rd(R(i))
                rd([('s','m0')]); self.kind='ldsdma'; return
            if '_load' in base:
                wr(R(0))
                for i in range(1,len(ops)): rd(R(i))
            elif 'atomic' in base and ('sc0' in mods):
                wr(R(0))
                for i in range(0,len(ops)): rd(R(i))
            else:
                for i in range(len(ops)): rd(R(i))
                if ('x4' in base or 'x3' in base) and '_store' in base: self.kind='widestore'
            return
        if base.startswith('s_'):
            self.kind='salu'
            if base.startswith('s_load') or base.startswith('s_buffer_load') or base in ('s_memtime','s_memrealtime'):
                self.kind='smem'; wr(R(0))
                for i in range(1,len(ops)): rd(R(i))
                return
            if base in ('s_waitcnt','s_barrier','s_endpgm','s_sleep','s_setprio','s_setreg_b32','s_setreg_imm32_b32'): return
            if base.startswith('s_cmp') or base.startswith('s_bitcmp'):
                for i in range(len(ops)): rd(R(i))
                return
            if base in ('s_setpc_b64',):
                rd(R(0)); self.kind='branch'; self.target=None; return
            if base in ('s_swappc_b64',):
                wr(R(0)); rd(R(1)); self.kind='branch'; self.target=None; return
            wr(R(0))
            for i in range(1,len(ops)): rd(R(i))
            if 'saveexec' in base: wr(_regs('exec')); rd(_regs('exec'))
            return
        raise ValueError('unknown instruction: '+text)

def store_data_regs(ins):
    ops=ins.ops
    if ins.op.startswith('buffer_store'): return set(n for k,n in _regs(ops[0]))
    if ins.op.startswith('global_store'): return set(n for k,n in _regs(ops[1]))
    return set()

def required(prod, cons):
    need=0
    pv = prod.kind in ('valu','trans','permlane','readlane','writelane')
    cv = cons.kind in ('valu','trans','permlane','readlane','writelane')
    if prod.kind=='mfma':
        ov_r = prod.vw & cons.vr; ov_w = prod.vw & cons.vw
        P = prod.passes
        if cons.kind=='mfma':
            AB = cons.vr - cons.srcc
            ab_regs=set()
            for i in (1,2):
                ab_regs |= set(n for k,n in _regs(cons.ops[i]))
            if prod.vw & ab_regs: need=max(need, {4:8,8:12}[P])
            if prod.vw & cons.srcc:
                same = (prod.vw == cons.srcc) and prod.passes==cons.passes
                if not same: need=max(need, {4:6,8:10}[P])
            elif ov_w:
                need=max(need, {4:6,8:10}[P])
        else:
            if (ov_r or ov_w) and cons.kind in ('valu','trans','permlane','readlane','writelane','ds','vmem','widestore','ldsdma'):
                need=max(need, {4:8,8:12}[P])
            if cv and (prod.srcc & cons.vw): need=max(need, {4:3,8:7}[P])
    if pv:
        if cons.kind=='mfma' and (prod.vw & cons.vr): need=max(need,2)
        if cons.dpp and (prod.vw & cons.vr): need=max(need,2)
        if cons.kind=='permlane' and (prod.vw & cons.vr): need=max(need,2)
        if cons.kind=='readlane' and (prod.vw & cons.vr): need=max(need,1)
        if prod.kind=='trans' and cv and cons.kind!='trans' and (prod.vw & cons.vr): need=max(need,1)
        if prod.kind=='trans' and cons.kind=='trans' and (prod.vw & cons.vr): need=max(need,1)
        if prod.sw:
            o = prod.sw & cons.sr
            if o:
                if cons.kind in ('vmem','widestore','ldsdma','ds'): need=max(need,5)
                elif cons.kind in ('readlane','writelane'): need=max(need,4)
                elif cv: need=max(need,2)
                elif cons.kind=='mfma': need=max(need,4)
                elif cons.kind in ('salu','smem','branch'): need=max(need,1)
            if ('exec_lo' in prod.sw):
                if cons.dpp: need=max(need,5)
                if cons.kind in ('mfma','readlane','writelane','permlane'): need=max(need,4)
            if ('vcc_lo' in prod.sw) and cons.kind=='branch' and 'vcc' in cons.op: need=max(need,5)
    if prod.kind=='widestore':
        if cons.vw & store_data_regs(prod) and cons.kind not in ('label','directive'):
            need=max(need, 2)
    if prod.kind in ('salu',) and 'm0' in prod.sw:
        if cons.kind=='ldsdma' or (cons.kind=='ds' and 'addtid' in cons.op): need=max(need,1)
    return need

class Asm:
    def __init__(self):
        self.ins=[]
    def __call__(self, text):
        for line in text.split('\n'):
            line=line.strip()
            if not line or line.startswith(';'):
                continue
            if line.startswith('STAMP'):
                self.stamp(int(line[5:])); continue
            self.ins.append(Ins(line))
    def label(self, name): self.ins.append(Ins(name+':'))
    stamps = False
    dbgtime = False
    def endpgm(self):
        if self.dbgtime:
            self("""s_mov_b64 exec, -1
            s_waitcnt vmcnt(0) lgkmcnt(0)
            s_memrealtime s[98:99]
            s_waitcnt lgkmcnt(0)
            s_not_b32 s100, s100
            v_mov_b32 v2, 16
            v_mov_b32 v3, s100
            v_mov_b32 v4, 20
            v_mov_b32 v5, s98
            s_mov_b64 exec, 1
            global_atomic_umax v2, v3, s[28:29]
            global_atomic_umax v4, v5, s[28:29]
            s_waitcnt vmcnt(0)""")
        self("s_endpgm")
    def stamp(self, i):
        if self.stamps == 2:
            self(f"s_memtime s[{76+2*i}:{77+2*i}]\ns_waitcnt lgkmcnt(0)")
        elif self.stamps:
            self(f"s_memrealtime s[{76+2*i}:{77+2*i}]\ns_waitcnt lgkmcnt(0)")
    def stamp_dump(self, n, sW, dbg_off, tag):
        if not self.stamps: return
        self(f"s_cmp_eq_u32 s{sW}, 0\ns_cbranch_scc0 L_nodump{tag}")
        self(f"s_lshl_b32 s39, s2, 7\ns_add_u32 s39, s39, {dbg_off}\nv_mov_b32 v2, s39\ns_mov_b64 exec, 1")
        for i in range(n):
            self(f"v_mov_b32 v3, s{76+2*i}\nglobal_store_dword v2, v3, s[30:31] offset:{4*i}")
        self("s_mov_b64 exec, -1")
        self.label(f"L_nodump{tag}")
    MAXW=13
    def finalize(self):
        ins=self.ins
        labels={x.label:i for i,x in enumerate(ins) if x.kind=='label'}
        out=[]
        window=[]
        fwd_pending={}
        def need_for(win, c):
            n=0
            for p,age in win:
                r=required(p,c)
                if r-age>n: n=r-age
            return n
        def advance(win, x):
            st=x.states
            win=[(p,a+st) for p,a in win if a+st<self.MAXW]
            if x.kind not in ('label','directive','nop'): win.append((x,0))
            return win
        def emit_nop(n):
            nonlocal window
            while n>0:
                k=min(n,16)
                nop=Ins('s_nop %d'%(k-1)); out.append(nop); window=advance(window,nop); n-=k
        for i,x in enumerate(ins):
            if x.kind=='label':
                for w in fwd_pending.get(x.label,[]):
                    window = window + w
                out.append(x); continue
            if x.kind=='directive':
                out.append(x); continue
            n=need_for(window,x)
            emit_nop(n)
            if x.kind=='branch' and x.target is not None:
                tgt=labels.get(x.target)
                if tgt is None: raise ValueError('unknown label '+x.target)
                if tgt<=i:
                    w=advance(window,x); tot=0; extra=0
                    j=tgt;
                    ww=list(w)
                    while j<len(ins) and tot<self.MAXW:
                        y=ins[j]; j+=1
                        if y.kind in ('label','directive'): continue
                        r=need_for(ww,y)
                        if r>extra: extra=max(extra,r)
                        ww=[(p,a+y.states) for p,a in ww]; tot+=y.states
                        if y.kind=='branch':
                            break
                    emit_nop(extra)
                else:
                    fwd_pending.setdefault(x.target,[]).append(advance(window,x))
            out.append(x); window=advance(window,x)
            if x.kind=='branch' and (x.op=='s_branch' or x.op=='s_setpc_b64' or x.op=='s_endpgm'):
                window=[]
            if x.op=='s_endpgm': window=[]
        self.out=out
        return '\n'.join(('' if y.kind in ('label',) else '    ')+y.text for y in out)
```

```python
from layout import *
LOG2E = '0x3fb8aa3b'
DPP1 = 'quad_perm:[1,0,3,2] row_mask:0xf bank_mask:0xf'
DPP2 = 'quad_perm:[2,3,0,1] row_mask:0xf bank_mask:0xf'
WKV = 0; WQ = 57344; WQ6 = 0; WPHI = 4096
RED = 8192
WOST = 15360
EX = 61440
OFR = 0
OUTT = 65536; OUT_S = 240
X = 16; TT = 128; ACCK = 140; ACCV = 156; WF = 172; WPH = 188; IDN = 196; P = 204; EM = 220; F = 236
WO = 16; G = 144; SUM = 208; KVF = 216; OA = 144; FA = 160; OB = 176
sTB,sH,sW,sTT,sCG = 32,33,34,35,36
sEVEN,sODD,sLO2,sHI2,sHI32,sD28 = 44,46,48,50,52,54
sL = 56
sLOs, sHIs = 58, 59
SRD_W = 64; SRD_P = 68; SRD_O = 72

def transpose_ops(g):
    R = [X+16*g+4*i for i in range(4)]
    A0, A2, T = TT, TT+4, TT+8
    s1 = []
    for d in range(4):
        s1 += [f"v_cndmask_b32_dpp v{A0+d}, v{R[1]+d}, v{R[0]+d}, vcc {DPP1}",
               f"v_mov_b32_dpp v{T+(2*d)%4}, v{R[0]+d} {DPP1}",
               f"v_cndmask_b32_dpp v{A2+d}, v{R[3]+d}, v{R[2]+d}, vcc {DPP1}",
               f"v_mov_b32_dpp v{T+(2*d+1)%4}, v{R[2]+d} {DPP1}",
               f"v_cndmask_b32_e64 v{R[1]+d}, v{T+(2*d)%4}, v{R[1]+d}, s[{sODD}:{sODD+1}]",
               f"v_cndmask_b32_e64 v{R[3]+d}, v{T+(2*d+1)%4}, v{R[3]+d}, s[{sODD}:{sODD+1}]"]
    s2 = []
    for d in range(4):
        s2 += [f"v_cndmask_b32_dpp v{R[0]+d}, v{A2+d}, v{A0+d}, vcc {DPP2}",
               f"v_mov_b32_dpp v{T+(2*d)%4}, v{A0+d} {DPP2}",
               f"v_mov_b32_dpp v{T+(2*d+1)%4}, v{R[1]+d} {DPP2}",
               f"v_cndmask_b32_dpp v{R[1]+d}, v{R[3]+d}, v{R[1]+d}, vcc {DPP2}",
               f"v_cndmask_b32_e64 v{R[2]+d}, v{T+(2*d)%4}, v{A2+d}, s[{sHI2}:{sHI2+1}]",
               f"v_cndmask_b32_e64 v{R[3]+d}, v{T+(2*d+1)%4}, v{R[3]+d}, s[{sHI2}:{sHI2+1}]"]
    return [f"s_mov_b64 vcc, s[{sEVEN}:{sEVEN+1}]"] + s1 + [f"s_mov_b64 vcc, s[{sLO2}:{sLO2+1}]"] + s2

def softmax(a, acc):
    KB = WF
    t = TT
    for i in range(8): a(f"v_cvt_pk_bf16_f32 v{KB+i}, v{acc+2*i}, v{acc+2*i+1}")
    a(f"v_cndmask_b32_e64 v{KB+6}, v{KB+6}, 0, s[{sHI32}:{sHI32+1}]")
    a(f"v_cndmask_b32_e64 v{KB+7}, v{KB+7}, 0, s[{sHI32}:{sHI32+1}]")
    a(f"v_mfma_f32_32x32x16_bf16 v[{P}:{P+15}], v[{WPH}:{WPH+3}], v[{KB}:{KB+3}], 0")
    a(f"v_mfma_f32_32x32x16_bf16 v[{P}:{P+15}], v[{WPH+4}:{WPH+7}], v[{KB+4}:{KB+7}], v[{P}:{P+15}]")
    PP, PM = KB+8, KB+12
    NI, PI_ = t, t+1
    a(f"v_mov_b32 v{NI}, 0xff800000\nv_mov_b32 v{PI_}, 0x7f800000")
    for i in range(4):
        a(f"v_cndmask_b32_e64 v{PP+i}, v{P+12+i}, v{NI}, s[{sHI32}:{sHI32+1}]")
        a(f"v_cndmask_b32_e64 v{PM+i}, v{P+12+i}, v{PI_}, s[{sHI32}:{sHI32+1}]")
    mx, mn, mx2, mn2 = t+2, t+4, t+6, t+7
    a(f"""v_max3_f32 v{mx}, v{P}, v{P+1}, v{P+2}
    v_min3_f32 v{mn}, v{P}, v{P+1}, v{P+2}
    v_max3_f32 v{mx2}, v{P+3}, v{P+4}, v{P+5}
    v_min3_f32 v{mn2}, v{P+3}, v{P+4}, v{P+5}
    v_max3_f32 v{mx}, v{mx}, v{P+6}, v{P+7}
    v_min3_f32 v{mn}, v{mn}, v{P+6}, v{P+7}
    v_max3_f32 v{mx2}, v{mx2}, v{P+8}, v{P+9}
    v_min3_f32 v{mn2}, v{mn2}, v{P+8}, v{P+9}
    v_max3_f32 v{mx}, v{mx}, v{P+10}, v{P+11}
    v_min3_f32 v{mn}, v{mn}, v{P+10}, v{P+11}
    v_max3_f32 v{mx2}, v{mx2}, v{PP}, v{PP+1}
    v_min3_f32 v{mn2}, v{mn2}, v{PM}, v{PM+1}
    v_max3_f32 v{mx}, v{mx}, v{PP+2}, v{PP+3}
    v_min3_f32 v{mn}, v{mn}, v{PM+2}, v{PM+3}
    v_max_f32 v{mx}, v{mx}, v{mx2}
    v_min_f32 v{mn}, v{mn}, v{mn2}
    v_mov_b32 v{mx2}, v{mx}
    v_mov_b32 v{mn2}, v{mn}
    v_permlane32_swap_b32 v{mx}, v{mx2}
    v_permlane32_swap_b32 v{mn}, v{mn2}
    v_max_f32 v{mx}, v{mx}, v{mx2}
    v_min_f32 v{mn}, v{mn}, v{mn2}
    v_mul_f32 v{mx}, 0xbfb8aa3b, v{mx}
    v_mul_f32 v{mn}, {LOG2E}, v{mn}""")
    sLp = f"s[{sL}:{sL+1}]"
    for i in range(0,16,2):
        sm = P+i if i<12 else PM+i-12
        sp_ = P+i if i<12 else PP+i-12
        a(f"v_pk_fma_f32 v[{EM+i}:{EM+i+1}], v[{sm}:{sm+1}], {sLp}, v[{mn}:{mn+1}] op_sel_hi:[1,1,0] neg_lo:[1,0,0] neg_hi:[1,0,0]")
        a(f"v_pk_fma_f32 v[{P+i}:{P+i+1}], v[{sp_}:{sp_+1}], {sLp}, v[{mx}:{mx+1}] op_sel_hi:[1,1,0]")
    for i in range(16):
        a(f"v_exp_f32 v{P+i}, v{P+i}")
        a(f"v_exp_f32 v{EM+i}, v{EM+i}")
    sP, sM = t+8, t+10
    a(f"v_pk_add_f32 v[{sP}:{sP+1}], v[{P}:{P+1}], v[{P+2}:{P+3}]")
    a(f"v_pk_add_f32 v[{sM}:{sM+1}], v[{EM}:{EM+1}], v[{EM+2}:{EM+3}]")
    for i in range(4,16,2):
        a(f"v_pk_add_f32 v[{sP}:{sP+1}], v[{sP}:{sP+1}], v[{P+i}:{P+i+1}]")
        a(f"v_pk_add_f32 v[{sM}:{sM+1}], v[{sM}:{sM+1}], v[{EM+i}:{EM+i+1}]")
    a(f"""v_add_f32 v{sP}, v{sP}, v{sP+1}
    v_add_f32 v{sM}, v{sM}, v{sM+1}
    v_mov_b32 v{sP+1}, v{sP}
    v_mov_b32 v{sM+1}, v{sM}
    v_permlane32_swap_b32 v{sP}, v{sP+1}
    v_permlane32_swap_b32 v{sM}, v{sM+1}
    v_add_f32 v{sP}, v{sP}, v{sP+1}
    v_add_f32 v{sM}, v{sM}, v{sM+1}
    v_rcp_f32 v{sP}, v{sP}
    v_rcp_f32 v{sM}, v{sM}""")
    for i in range(0,16,2):
        a(f"v_pk_mul_f32 v[{P+i}:{P+i+1}], v[{P+i}:{P+i+1}], v[{sP}:{sP+1}] op_sel_hi:[1,0]")
        a(f"v_pk_mul_f32 v[{EM+i}:{EM+i+1}], v[{EM+i}:{EM+i+1}], v[{sM}:{sM+1}] op_sel_hi:[1,0]")
    for i in range(8):
        a(f"v_cvt_pk_bf16_f32 v{F+i}, v{P+2*i}, v{P+2*i+1}")
        a(f"v_cvt_pk_bf16_f32 v{F+8+i}, v{EM+2*i}, v{EM+2*i+1}")

def flag_and_poll(a, tag, flag_off_code, poll_off_code, nflags, gate_reg=None, poll=True):
    a(f"s_cmp_eq_u32 s{sW}, 0\ns_cbranch_scc0 L_A_skip{tag}")
    if gate_reg is not None:
        a("s_mov_b32 s60, 0")
        a.label(f'L_A_gate{tag}')
        a(f"""v_readfirstlane_b32 s39, v{gate_reg}
        s_cmp_lg_u32 s39, 0
        s_cbranch_scc1 L_A_gateok{tag}
        s_add_u32 s60, s60, 1
        s_cmp_gt_u32 s60, {SPIN_MAX}
        s_cbranch_scc1 L_A_gateok{tag}
        s_sleep 1
        v_mov_b32 v3, 0
        global_load_dword v{gate_reg}, v3, {sp(S_DBG)} sc1
        s_waitcnt vmcnt(0)
        s_branch L_A_gate{tag}""")
        a.label(f'L_A_gateok{tag}')
    if flag_off_code:
        a(flag_off_code)
        a(f"""v_mov_b32 v2, s39
        v_mov_b32 v3, 1
        s_mov_b64 exec, 1
        global_store_dword v2, v3, {sp(S_WS)} sc1
        s_mov_b64 exec, -1""")
    if poll:
        a(poll_off_code)
        a(f"v_and_b32 v2, {nflags-1}, v1\nv_lshl_add_u32 v2, v2, 2, s39")
        a.label(f'L_A_poll{tag}')
        a(f"""global_load_dword v3, v2, {sp(S_WS)} sc1
        s_waitcnt vmcnt(0)
        v_cmp_ne_u32 vcc, 1, v3
        s_cmp_eq_u64 vcc, 0
        s_cbranch_scc1 L_A_skip{tag}
        s_add_u32 s60, s60, 1
        s_cmp_gt_u32 s60, {SPIN_MAX}
        s_cbranch_scc1 L_A_skip{tag}
        s_sleep 1
        s_branch L_A_poll{tag}""")
    a.label(f'L_A_skip{tag}')

def gen_A(a):
    vXO, vWK, vWQa, vWQb, vDM = 4, 5, 6, 7, 8
    a.stamp(0)
    a(f"""
    v_lshrrev_b32 v2, 6, v0
    v_and_b32 v1, 63, v0
    v_readfirstlane_b32 s{sW}, v2
    s_and_b32 s39, s2, 3
    s_lshl_b32 s39, s39, 2
    s_bfe_u32 s40, s2, 0x20003
    s_add_u32 s{sTB}, s39, s40
    s_bfe_u32 s39, s2, 0x10002
    s_lshl_b32 s39, s39, 3
    s_lshr_b32 s40, s2, 5
    s_add_u32 s{sH}, s39, s40
    s_and_b32 s{sCG}, s2, 3
    s_bfe_u32 s39, s2, 0x10002
    s_lshl_b32 s39, s39, 5
    s_lshr_b32 s40, s2, 3
    s_add_u32 s{sTT}, s39, s40
    s_lshl_b32 s39, s{sTB}, 7
    s_lshl_b32 s40, s{sW}, 5
    s_add_u32 s39, s39, s40
    s_mul_i32 s39, s39, 896
    v_bfe_u32 v2, v1, 2, 3
    v_mul_u32_u24 v2, {4*896}, v2
    v_lshrrev_b32 v3, 5, v1
    v_lshl_add_u32 v2, v3, 6, v2
    v_and_b32 v3, 3, v1
    v_lshl_add_u32 v2, v3, 4, v2
    v_add_u32 v{vXO}, s39, v2
    v_lshrrev_b32 v2, 5, v1
    v_bfe_u32 v3, v1, 2, 2
    v_lshl_add_u32 v2, v2, 2, v3
    v_mul_u32_u24 v2, 2688, v2
    v_bfe_u32 v3, v1, 4, 1
    v_mul_u32_u24 v3, 896, v3
    v_add_u32 v2, v2, v3
    v_and_b32 v3, 3, v1
    v_lshl_add_u32 v2, v3, 4, v2
    s_mul_i32 s41, s{sH}, 56
    s_add_u32 s39, s41, 896
    v_add_u32 v{vDM}, s39, v2
    s_waitcnt lgkmcnt(0)
    s_mov_b32 s{SRD_W}, s{S_WQKV}
    s_mov_b32 s{SRD_W+1}, s{S_WQKV+1}
    s_mov_b32 s{SRD_W+2}, {448*2688}
    s_mov_b32 s{SRD_W+3}, 0x00020000
    s_mul_i32 s42, s{sW}, 21504
    s_lshl_b32 m0, s{sW}, 10
    """)
    def xl(g):
        for i in range(4):
            a(f"global_load_dwordx4 v[{X+16*g+4*i}:{X+16*g+4*i+3}], v{vXO}, {sp(S_X)} offset:{i*896+128*g}")
    def wl(g):
        for k in range(2):
            a(f"buffer_load_dwordx4 v{vDM}, s[{SRD_W}:{SRD_W+3}], s42 offen lds")
            a(f"s_add_u32 m0, m0, 4096\ns_add_u32 s42, s42, 86016")
    xl(0); xl(1); wl(0)
    for g in range(2,7):
        xl(g); wl(g-1)
    wl(6)
    a(f"""
    v_lshrrev_b32 v2, 2, v1
    v_mul_u32_u24 v2, 2688, v2
    v_and_b32 v3, 3, v1
    v_lshl_add_u32 v2, v3, 4, v2
    v_add_u32 v9, s41, v2
    s_mul_i32 s43, s{sW}, 43008
    s_lshl_b32 s39, s{sW}, 10
    s_add_u32 m0, s39, {WQ}
    """)
    for i in range(6):
        a(f"s_nop 0\nbuffer_load_dwordx4 v9, s[{SRD_W}:{SRD_W+3}], s43 offen lds")
        a(f"s_add_u32 m0, m0, 4096\ns_add_u32 s43, s43, 172032")
    a(f"""
    s_mov_b32 s{sEVEN}, 0x55555555
    s_mov_b32 s{sEVEN+1}, 0x55555555
    s_mov_b32 s{sODD}, 0xaaaaaaaa
    s_mov_b32 s{sODD+1}, 0xaaaaaaaa
    s_mov_b32 s{sLO2}, 0x33333333
    s_mov_b32 s{sLO2+1}, 0x33333333
    s_mov_b32 s{sHI2}, 0xcccccccc
    s_mov_b32 s{sHI2+1}, 0xcccccccc
    s_mov_b32 s{sHI32}, 0
    s_mov_b32 s{sHI32+1}, -1
    s_mov_b32 s{sD28}, 0xf0000000
    s_mov_b32 s{sD28+1}, 0xf0000000
    s_mov_b32 s{sL}, {LOG2E}
    s_mov_b32 s{sL+1}, {LOG2E}
    s_mov_b32 s{sLOs}, 0x00003f80
    s_mov_b32 s{sHIs}, 0x3f800000
    s_mov_b32 s{SRD_P}, s{S_WPHI}
    s_mov_b32 s{SRD_P+1}, s{S_WPHI+1}
    s_mov_b32 s{SRD_P+2}, {16*1568}
    s_mov_b32 s{SRD_P+3}, 0x00020000
    s_mov_b32 s{SRD_O}, s{S_WO}
    s_mov_b32 s{SRD_O+1}, s{S_WO+1}
    s_mov_b32 s{SRD_O+2}, {448*896}
    s_mov_b32 s{SRD_O+3}, 0x00020000
    v_and_b32 v2, 15, v1
    v_lshrrev_b32 v3, 2, v2              ; i>>2
    v_and_b32 v2, 3, v2
    v_lshlrev_b32 v2, 3, v2              ; 8*(i&3)
    v_bfe_u32 v10, v1, 4, 1
    v_lshl_add_u32 v2, v10, 5, v2        ; + 32*(G&1)
    v_lshl_add_u32 v10, v3, 6, v2
    v_lshrrev_b32 v11, 5, v1             ; h2
    v_lshl_add_u32 v{vWK}, v11, 12, v10  ; W_kv: + 4096*h2
    v_lshl_add_u32 v{vWQb}, v11, 11, v10 ; W_q : + 64*32*h2
    v_add_u32 v{vWQa}, {WQ}, v{vWQb}
    v_lshl_add_u32 v12, v11, 2, v3
    v_mul_u32_u24 v12, 56, v12
    v_add_u32 v12, v12, v2
    v_add_u32 v12, {WPHI}, v12
    v_lshl_add_u32 v13, v11, 8, v10
    """)
    for i in range(16): a(f"v_mov_b32 v{ACCK+i}, 0\nv_mov_b32 v{ACCV+i}, 0")
    a(f"""
    v_and_b32 v2, 31, v1
    v_lshrrev_b32 v3, 4, v2
    v_lshlrev_b32 v3, 2, v3
    v_bfe_u32 v14, v2, 3, 1
    v_lshl_add_u32 v3, v14, 1, v3
    v_bfe_u32 v14, v2, 1, 1
    v_add_u32 v3, v3, v14                ; q*
    v_bfe_u32 v14, v2, 2, 1
    v_xor_b32 v14, v14, v11
    v_lshl_add_u32 v3, v14, 4, v3        ; q* + 16*mismatch
    v_and_b32 v14, 1, v2
    v_lshlrev_b32 v14, 4, v14
    v_mov_b32 v15, 0x3f80
    v_lshlrev_b32 v15, v14, v15          ; val
    """)
    for q in range(8):
        a(f"v_cmp_eq_u32 s[40:41], {q}, v3\nv_cndmask_b32_e64 v{IDN+q}, 0, v15, s[40:41]")
    def wreads(g, m, buf):
        o = WF + 8*buf
        for part in range(2):
            for u in range(2):
                a(f"ds_read_b64_tr_b16 v[{o+4*part+2*u}:{o+4*part+2*u+1}], v{vWK} offset:{512*(16*g+2*m+u)+256*part}")
    def mf(g, m, buf):
        o = WF + 8*buf; xr = X+16*g+4*m
        a(f"v_mfma_f32_32x32x16_bf16 v[{ACCK}:{ACCK+15}], v[{o}:{o+3}], v[{xr}:{xr+3}], v[{ACCK}:{ACCK+15}]")
        a(f"v_mfma_f32_32x32x16_bf16 v[{ACCV}:{ACCV+15}], v[{xr}:{xr+3}], v[{o+4}:{o+7}], v[{ACCV}:{ACCV+15}]")
    a.stamp(1)
    a("s_waitcnt vmcnt(44)")
    a.stamp(2)
    for t in transpose_ops(0): a(t)
    waits = [38, 32, 28, 22, 16, 10, 8]
    for g in range(7):
        a(f"s_waitcnt vmcnt({waits[g]})\ns_barrier")
        wreads(g, 0, 0); wreads(g, 1, 1)
        if g == 1:
            a(f"""s_lshl_b32 m0, s{sW}, 10
            s_nop 0
            buffer_load_dwordx4 v9, s[{SRD_W}:{SRD_W+3}], s43 offen lds
            s_and_b32 s39, s{sW}, 1
            s_lshl_b32 s39, s39, 10
            s_add_u32 m0, s39, {WPHI}
            s_mul_i32 s40, s{sH}, 1568
            s_add_u32 s40, s40, s39
            v_lshlrev_b32 v2, 4, v1
            buffer_load_dwordx4 v2, s[{SRD_P}:{SRD_P+3}], s40 offen lds""")
        tr = transpose_ops(g+1) if g < 6 else []
        k = 0
        def take(n):
            nonlocal k
            for _ in range(n):
                if k < len(tr): a(tr[k]); k += 1
        take(20)
        a("s_waitcnt lgkmcnt(4)"); mf(g, 0, 0); wreads(g, 2, 0); take(10)
        a("s_waitcnt lgkmcnt(4)"); mf(g, 1, 1); wreads(g, 3, 1); take(10)
        a("s_waitcnt lgkmcnt(4)"); mf(g, 2, 0); take(12)
        a("s_waitcnt lgkmcnt(0)"); mf(g, 3, 1)
        assert k == len(tr)
    a.stamp(3)
    a("s_waitcnt vmcnt(0)\ns_barrier")
    for st in range(2):
        for u in range(2):
            a(f"ds_read_b64_tr_b16 v[{WPH+4*st+2*u}:{WPH+4*st+2*u+1}], v12 offset:{56*(16*st+8*u)}")
    a("s_waitcnt lgkmcnt(0)")
    softmax(a, ACCK)
    VB = TT
    a(f"""v_and_b32 v2, 31, v1
    v_cmp_eq_u32 s[40:41], 28, v2
    v_mov_b32 v3, 0x3f803f80
    v_cndmask_b32_e64 v3, 0, v3, s[40:41]""")
    for i in range(8): a(f"v_cvt_pk_bf16_f32 v{VB+i}, v{ACCV+2*i}, v{ACCV+2*i+1}")
    for i in range(8): a(f"v_cndmask_b32_e64 v{VB+i}, v{VB+i}, v3, s[{sD28}:{sD28+1}]")
    for (dst, f0) in ((P, F), (EM, F+8)):
        a(f"v_mfma_f32_32x32x16_bf16 v[{dst}:{dst+15}], v[{f0}:{f0+3}], v[{IDN}:{IDN+3}], 0")
        a(f"v_mfma_f32_32x32x16_bf16 v[{dst}:{dst+15}], v[{f0+4}:{f0+7}], v[{IDN+4}:{IDN+7}], v[{dst}:{dst+15}]")
    AT = WF
    for i in range(8): a(f"v_cvt_pk_bf16_f32 v{AT+i}, v{P+2*i}, v{P+2*i+1}")
    for i in range(8): a(f"v_cvt_pk_bf16_f32 v{AT+8+i}, v{EM+2*i}, v{EM+2*i+1}")
    for (dst, a0) in ((P, AT), (EM, AT+8)):
        a(f"v_mfma_f32_32x32x16_bf16 v[{dst}:{dst+15}], v[{a0}:{a0+3}], v[{VB}:{VB+3}], 0")
        a(f"v_mfma_f32_32x32x16_bf16 v[{dst}:{dst+15}], v[{a0+4}:{a0+7}], v[{VB+4}:{VB+7}], v[{dst}:{dst+15}]")
    a(f"""s_lshl_b32 s39, s{sW}, 10
    s_add_u32 s39, s39, {RED}
    v_lshl_add_u32 v2, v1, 4, s39
    s_lshl_b32 s39, s{sW}, 12
    s_add_u32 s39, s39, {RED}
    v_lshl_add_u32 v3, v1, 4, s39""")
    for i in range(8): a(f"v_cvt_pk_bf16_f32 v{F+i}, v{P+2*i}, v{P+2*i+1}")
    for i in range(8): a(f"v_cvt_pk_bf16_f32 v{F+8+i}, v{EM+2*i}, v{EM+2*i+1}")
    for sg in range(4): a(f"ds_write_b128 v2, v[{F+4*sg}:{F+4*sg+3}] offset:{4096*sg}")
    a("s_waitcnt lgkmcnt(0)\ns_barrier")
    for src in range(4): a(f"ds_read_b128 v[{P+4*src}:{P+4*src+3}], v3 offset:{1024*src}")
    for i in range(8): a(f"v_mov_b32 v{EM+i}, 0")
    a(f"""s_lshl_b32 s39, s{sH}, 4
    s_add_u32 s39, s39, s{sTB}
    s_lshl_b32 s39, s39, 12
    s_lshl_b32 s40, s{sW}, 10
    s_add_u32 s39, s39, s40
    s_add_u32 s39, s39, {KVP}
    v_lshl_add_u32 v2, v1, 4, s39
    v_mov_b32 v3, 0
    s_waitcnt lgkmcnt(0)""")
    for src in range(4):
        for d in range(4):
            a(f"v_dot2c_f32_bf16 v{EM+2*d}, s{sLOs}, v{P+4*src+d}")
            a(f"v_dot2c_f32_bf16 v{EM+2*d+1}, s{sHIs}, v{P+4*src+d}")
    for d in range(4): a(f"v_cvt_pk_bf16_f32 v{F+d}, v{EM+2*d}, v{EM+2*d+1}")
    a(f"global_store_dwordx4 v2, v[{F}:{F+3}], {sp(S_WS)} sc1")
    a(f"global_load_dword v14, v3, {sp(S_DBG)} sc1")
    a.stamp(4)
    def qreads(g, m, buf):
        o = WF + 4*buf
        for u in range(2):
            if g < 6: a(f"ds_read_b64_tr_b16 v[{o+2*u}:{o+2*u+1}], v{vWQa} offset:{64*(64*g+8*m+4*u)}")
            else:     a(f"ds_read_b64_tr_b16 v[{o+2*u}:{o+2*u+1}], v{vWQb} offset:{WQ6+64*(8*m+4*u)}")
    steps = [(g,m) for g in range(7) for m in range(4)]
    for s in range(3): qreads(*steps[s], s)
    for s,(g,m) in enumerate(steps):
        rem = min(2, len(steps)-1-s)
        a(f"s_waitcnt lgkmcnt({2*rem})")
        o = WF + 4*(s%4); xr = X+16*g+4*m
        cin = '0' if s == 0 else f"v[{ACCK}:{ACCK+15}]"
        a(f"v_mfma_f32_32x32x16_bf16 v[{ACCK}:{ACCK+15}], v[{o}:{o+3}], v[{xr}:{xr+3}], {cin}")
        if s+3 < len(steps): qreads(*steps[s+3], (s+3)%4)
    a.stamp(5)
    a("s_waitcnt vmcnt(0)\ns_barrier")
    flag_and_poll(a, '1', f"""s_lshl_b32 s39, s{sH}, 7
        s_lshl_b32 s40, s{sTB}, 2
        s_add_u32 s39, s39, s40
        s_add_u32 s39, s39, {F1}""", None, 16, gate_reg=14, poll=False)
    a.stamp(6)
    a(f"""v_lshrrev_b32 v2, 2, v1
    v_mul_u32_u24 v2, 896, v2
    v_and_b32 v3, 3, v1
    v_lshl_add_u32 v2, v3, 4, v2
    s_mul_i32 s39, s{sCG}, 224
    s_mul_i32 s40, s{sW}, 56
    s_add_u32 s39, s39, s40
    v_add_u32 v9, s39, v2
    s_mul_i32 s44, s{sW}, {WOST}
    v_add_u32 v13, s44, v13
    s_mov_b32 m0, s44
    s_mov_b32 s42, 0""")
    for i in range(15):
        a(f"s_nop 0\nbuffer_load_dwordx4 v9, s[{SRD_O}:{SRD_O+3}], s42 offen lds")
        a(f"s_add_u32 m0, m0, 1024\ns_add_u32 s42, s42, 14336")
    softmax(a, ACCK)
    def woreads(rnd):
        n = 0
        for hd in range(8):
            for st in range(2):
                for u in range(2):
                    r0 = WO + 64*rnd + 8*hd + 4*st + 2*u
                    a(f"ds_read_b64_tr_b16 v[{r0}:{r0+1}], v13 offset:{64*(28*hd+16*st+8*u)}")
                    n += 1
                    if n % 12 == 0: a("s_waitcnt lgkmcnt(4)")
        a("s_waitcnt lgkmcnt(0)")
    a("s_waitcnt vmcnt(0)")
    woreads(0)
    a.stamp(7)
    flag_and_poll(a, '2', None, f"s_lshl_b32 s39, s{sH}, 7\ns_add_u32 s39, s39, {F1}", 16)
    a("s_barrier")
    a.stamp(8)
    a(f"""s_lshl_b32 s39, s{sH}, 16
    s_lshl_b32 s40, s{sW}, 10
    s_add_u32 s39, s39, s40
    s_add_u32 s39, s39, {KVP}
    v_lshl_add_u32 v2, v1, 4, s39""")
    for p in range(16):
        if p == 0: a(f"global_load_dwordx4 v[{G}:{G+3}], v2, {sp(S_WS)} sc1")
        else:
            a(f"v_add_u32 v2, 4096, v2")
            a(f"global_load_dwordx4 v[{G+4*p}:{G+4*p+3}], v2, {sp(S_WS)} sc1")
    a(f"s_mov_b32 m0, s44\ns_mov_b32 s42, {14*14336}")
    for i in range(15):
        a(f"s_nop 0\nbuffer_load_dwordx4 v9, s[{SRD_O}:{SRD_O+3}], s42 offen lds")
        a(f"s_add_u32 m0, m0, 1024\ns_add_u32 s42, s42, 14336")
    for i in range(8): a(f"v_mov_b32 v{SUM+i}, 0")
    for b in range(4):
        a(f"s_waitcnt vmcnt({31-4*(b+1)})")
        for p in range(4*b, 4*b+4):
            for d in range(4):
                a(f"v_dot2c_f32_bf16 v{SUM+2*d}, s{sLOs}, v{G+4*p+d}")
                a(f"v_dot2c_f32_bf16 v{SUM+2*d+1}, s{sHIs}, v{G+4*p+d}")
    for d in range(4): a(f"v_cvt_pk_bf16_f32 v{G+d}, v{SUM+2*d}, v{SUM+2*d+1}")
    a(f"""s_lshl_b32 s39, s{sW}, 10
    s_add_u32 s39, s39, {EX}
    v_lshl_add_u32 v2, v1, 4, s39
    v_lshlrev_b32 v3, 4, v1
    ds_write_b128 v2, v[{G}:{G+3}]
    s_waitcnt lgkmcnt(0)
    s_barrier""")
    for sg in range(4): a(f"ds_read_b128 v[{KVF+4*sg}:{KVF+4*sg+3}], v3 offset:{EX+1024*sg}")
    a(f"""s_lshl_b32 s39, s{sTB}, 2
    s_add_u32 s39, s39, s{sW}
    s_lshl_b32 s39, s39, 4
    s_add_u32 s39, s39, s{sH}
    s_lshl_b32 s39, s39, 11
    s_add_u32 s39, s39, {OF}
    v_lshl_add_u32 v2, v1, 4, s39
    s_waitcnt lgkmcnt(0)""")
    for sg in range(4):
        cin = '0' if sg == 0 else f"v[{OA}:{OA+15}]"
        a(f"v_mfma_f32_32x32x16_bf16 v[{OA}:{OA+15}], v[{KVF+4*sg}:{KVF+4*sg+3}], v[{F+4*sg}:{F+4*sg+3}], {cin}")
    a(f"""v_mov_b32 v10, v{OA+12}
    v_mov_b32 v11, v{OA+12}
    v_permlane32_swap_b32 v10, v11
    v_add_f32 v10, 0x358637bd, v11
    v_rcp_f32 v10, v10""")
    for i in range(0,16,2): a(f"v_pk_mul_f32 v[{OA+i}:{OA+i+1}], v[{OA+i}:{OA+i+1}], v[10:11] op_sel_hi:[1,0]")
    for i in range(8): a(f"v_cvt_pk_bf16_f32 v{OB+i}, v{OA+2*i}, v{OA+2*i+1}")
    a(f"v_cndmask_b32_e64 v{OB+6}, v{OB+6}, 0, s[{sHI32}:{sHI32+1}]")
    a(f"v_cndmask_b32_e64 v{OB+7}, v{OB+7}, 0, s[{sHI32}:{sHI32+1}]")
    a(f"global_store_dwordx4 v2, v[{OB}:{OB+3}], {sp(S_WS)} sc1")
    a(f"global_store_dwordx4 v2, v[{OB+4}:{OB+7}], {sp(S_WS)} offset:1024 sc1")
    a.stamp(9)
    a("s_waitcnt vmcnt(2)")
    woreads(1)
    a("s_waitcnt vmcnt(0)\ns_barrier")
    flag_and_poll(a, '3', f"""s_lshl_b32 s39, s{sTB}, 7
        s_lshl_b32 s40, s{sH}, 2
        s_add_u32 s39, s39, s40
        s_add_u32 s39, s39, {F2}""",
        f"s_lshr_b32 s39, s{sTT}, 2\ns_lshl_b32 s39, s39, 7\ns_add_u32 s39, s39, {F2}", 16)
    OL = 176
    a("s_barrier")
    a.stamp(10)
    a(f"""    s_lshl_b32 s39, s{sTT}, 15
    s_lshl_b32 s40, s{sW}, 13
    s_add_u32 s39, s39, s40
    s_add_u32 s39, s39, {OF}
    v_lshl_add_u32 v2, v1, 4, s39
    v_add_u32 v3, 4096, v2""")
    for i in range(8):
        a(f"global_load_dwordx4 v[{OL+4*i}:{OL+4*i+3}], v{2 if i<4 else 3}, {sp(S_WS)} offset:{1024*(i%4)} sc1")
    a(f"""s_lshl_b32 s39, s{sW}, 13
    v_lshl_add_u32 v10, v1, 4, s39
    v_lshlrev_b32 v11, 4, v1""")
    for i in range(8):
        a(f"s_waitcnt vmcnt({7-i})\nds_write_b128 v10, v[{OL+4*i}:{OL+4*i+3}] offset:{OFR+1024*i}")
    a("s_waitcnt lgkmcnt(0)\ns_barrier")
    RB = 176
    for s in range(3): a(f"ds_read_b128 v[{RB+4*s}:{RB+4*s+3}], v11 offset:{OFR+1024*s}")
    for s in range(32):
        rem = min(2, 31-s)
        a(f"s_waitcnt lgkmcnt({rem})")
        cin = '0' if s == 0 else f"v[{FA}:{FA+15}]"
        a(f"v_mfma_f32_32x32x16_bf16 v[{FA}:{FA+15}], v[{WO+4*s}:{WO+4*s+3}], v[{RB+4*(s%4)}:{RB+4*(s%4)+3}], {cin}")
        if s+3 < 32: a(f"ds_read_b128 v[{RB+4*((s+3)%4)}:{RB+4*((s+3)%4)+3}], v11 offset:{OFR+1024*(s+3)}")
    a.stamp(11)
    a(f"""v_and_b32 v2, 31, v1
    v_mul_u32_u24 v2, {OUT_S}, v2
    v_lshrrev_b32 v3, 5, v1
    v_lshl_add_u32 v2, v3, 3, v2
    s_mul_i32 s39, s{sW}, 56
    s_add_u32 s39, s39, {OUTT}
    v_add_u32 v2, s39, v2
    ; reader: row = t/14, chunk = t%14
    v_mul_u32_u24 v4, 4682, v0
    v_lshrrev_b32 v4, 16, v4
    v_mul_u32_u24 v5, 14, v4
    v_sub_u32 v5, v0, v5
    v_mul_u32_u24 v6, {OUT_S}, v4
    v_lshl_add_u32 v6, v5, 4, v6
    v_add_u32 v6, {OUTT}, v6
    v_mul_u32_u24 v7, 1792, v4
    v_lshl_add_u32 v7, v5, 4, v7
    s_lshl_b32 s39, s{sTT}, 5
    s_mul_i32 s39, s39, 1792
    s_mul_i32 s40, s{sCG}, 224
    s_add_u32 s39, s39, s40
    v_add_u32 v7, s39, v7
    v_add_u32 v8, {16*1792}, v7""")
    for i in range(8): a(f"v_cvt_pk_bf16_f32 v{OB+i}, v{FA+2*i}, v{FA+2*i+1}")
    for g in range(3): a(f"ds_write_b64 v2, v[{OB+2*g}:{OB+2*g+1}] offset:{16*g}")
    a(f"""s_mov_b32 exec_hi, 0
    ds_write_b64 v2, v[{OB+6}:{OB+7}] offset:48
    s_mov_b32 exec_hi, -1
    s_waitcnt lgkmcnt(0)
    s_barrier
    v_cmp_gt_u32 vcc, 224, v0
    s_and_saveexec_b64 s[40:41], vcc
    s_cbranch_execz L_A_end
    ds_read_b128 v[{OA}:{OA+3}], v6
    ds_read_b128 v[{OA+4}:{OA+7}], v6 offset:{16*OUT_S}
    s_waitcnt lgkmcnt(0)
    global_store_dwordx4 v7, v[{OA}:{OA+3}], {sp(S_OUT)}
    global_store_dwordx4 v8, v[{OA+4}:{OA+7}], {sp(S_OUT)}""")
    a.label('L_A_end')
    if a.stamps:
        a("s_mov_b64 exec, -1\ns_waitcnt vmcnt(0)")
        a.stamp(12)
        a.stamp_dump(13, sW, DBG, 'A')
    a.endpgm()
```

```python
from layout import *
LOG2E = '0x3fb8aa3b'; NLOG2E = '0xbfb8aa3b'; INV2PI = '0x3e22f983'

ROW = 272
TBL = 64*ROW
U_OFF = 4*TBL
U_SZ = 4608
T0_OFF = U_OFF
T0_S = 160
R_SZ = 16640; R_CP = 4160
EXC = 40960
Y1_OFF = 0; Y1_S = 144
O1_OFF = 16384; O1_S = 144

def gen_B(a, dump=None):
    sBT,sG,sIDX,sW,sPI,sC,sCH = 32,33,34,35,36,37,38
    a.stamp(0)
    a(f"""
    s_sub_u32 s{sBT}, s2, {NA}
    s_lshr_b32 s{sG}, s{sBT}, 5
    s_and_b32 s{sIDX}, s{sBT}, 31
    v_lshrrev_b32 v2, 6, v0
    v_and_b32 v1, 63, v0
    v_readfirstlane_b32 s{sW}, v2
    s_lshl_b32 s39, s{sBT}, 2
    s_waitcnt lgkmcnt(0)
    s_load_dword s40, {sp(S_LOGDT)}, s39
    s_load_dword s41, {sp(S_DSK)}, s39
    s_and_b32 s{sPI}, s{sW}, 1
    s_lshr_b32 s{sC}, s{sW}, 1
    s_lshl_b32 s{sCH}, s{sBT}, 1
    s_add_u32 s{sCH}, s{sCH}, s{sC}
    s_lshl_b32 s39, s{sCH}, 9
    s_lshl_b32 s42, s{sPI}, 8
    s_add_u32 s39, s39, s42
    v_lshl_add_u32 v3, v1, 2, s39
    global_load_dword v20, v3, {sp(S_LOGA)}
    global_load_dword v21, v3, {sp(S_AIM)}
    global_load_dword v22, v3, {sp(S_CR)}
    global_load_dword v23, v3, {sp(S_CI)}
    s_mul_i32 s39, s{sIDX}, {64*896}
    s_lshl_b32 s42, s{sG}, 7
    s_add_u32 s39, s39, s42
    v_lshrrev_b32 v4, 3, v0
    v_and_b32 v5, 7, v0
    v_mul_u32_u24 v6, 896, v4
    v_lshl_add_u32 v6, v5, 4, v6
    v_add_u32 v6, s39, v6
    v_add_u32 v7, {32*896}, v6
    global_load_dwordx4 v[12:15], v6, {sp(S_U)}
    global_load_dwordx4 v[16:19], v7, {sp(S_U)}
    v_mul_u32_u24 v8, {T0_S}, v4
    v_lshl_add_u32 v8, v5, 4, v8
    v_add_u32 v8, {T0_OFF}, v8
    v_lshrrev_b32 v9, 4, v1          ; G
    v_and_b32 v10, 15, v1            ; i
    v_lshrrev_b32 v11, 2, v10
    v_lshl_add_u32 v11, v9, 3, v11   ; 8G + (i>>2)
    v_mul_u32_u24 v11, {T0_S}, v11
    v_and_b32 v24, 3, v10
    v_lshl_add_u32 v11, v24, 3, v11
    s_lshl_b32 s39, s{sW}, 5
    s_add_u32 s39, s39, {T0_OFF}
    v_add_u32 v11, s39, v11
    s_lshl_b32 s39, s{sG}, 18
    s_lshl_b32 s42, s{sIDX}, 13
    s_add_u32 s39, s39, s42
    s_lshl_b32 s42, s{sW}, 8
    s_add_u32 s39, s39, s42
    s_add_u32 s39, s39, {UT}
    v_lshlrev_b32 v24, 10, v9
    v_lshl_add_u32 v24, v10, 4, v24
    v_add_u32 v24, s39, v24
    v_add_u32 v25, 4096, v24
    ; dt, D
    s_waitcnt lgkmcnt(0)
    s_lshl_b32 s39, s{sC}, 4
    s_lshr_b32 s40, s40, s39
    s_lshl_b32 s40, s40, 16
    s_lshr_b32 s41, s41, s39
    s_lshl_b32 s41, s41, 16
    v_mov_b32 v26, s40
    v_mul_f32 v26, {LOG2E}, v26
    v_exp_f32 v26, v26
    v_cvt_pk_bf16_f32 v26, v26, v26
    v_lshlrev_b32 v26, 16, v26        ; dt
    v_add_f32 v27, v26, v26           ; 2*dt
    s_waitcnt vmcnt(0)
    STAMP1
    ds_write_b128 v8, v[12:15]
    ds_write_b128 v8, v[16:19] offset:{32*T0_S}
    s_waitcnt lgkmcnt(0)
    s_barrier
    ds_read_b64_tr_b16 v[12:13], v11
    ds_read_b64_tr_b16 v[14:15], v11 offset:{4*T0_S}
    ds_read_b64_tr_b16 v[16:17], v11 offset:{32*T0_S}
    ds_read_b64_tr_b16 v[18:19], v11 offset:{36*T0_S}
    v_mov_b32 v28, 0
    s_waitcnt lgkmcnt(0)
    global_store_dwordx4 v24, v[12:15], {sp(S_WS)} sc1
    global_store_dwordx4 v25, v[16:19], {sp(S_WS)} sc1
    global_load_dword v29, v28, {sp(S_DBG)} sc1
    """)
    a.stamp(2)
    D0 = 32
    W1,W2,W4,W8,W256 = 48,50,52,54,56
    CUR1,CUR2,G,TM1,TM2 = 58,60,62,64,66
    PK1,PK2 = 68,69
    AL,BE = 70,71
    FA,FB = 72,88
    VT = 104
    a(f"""
    s_mul_i32 s39, s{sW}, {TBL}
    s_mov_b32 m0, s39
    v_and_b32 v2, 31, v1
    v_mul_u32_u24 v{VT}, {ROW}, v2
    v_lshrrev_b32 v2, 5, v1
    v_lshl_add_u32 v{VT}, v2, 4, v{VT}
    v_add_u32 v{VT}, s39, v{VT}
    s_mov_b32 s43, 0
    """)
    for i in range(16): a(f"v_mov_b32 v{D0+i}, 0")
    def cmul(dst, x, w, tmp):
        a(f"v_pk_mul_f32 v[{tmp}:{tmp+1}], v[{x}:{x+1}], v[{w}:{w+1}] op_sel_hi:[1,0]")
        a(f"v_pk_fma_f32 v[{dst}:{dst+1}], v[{x}:{x+1}], v[{w}:{w+1}], v[{tmp}:{tmp+1}] op_sel:[1,1,0] op_sel_hi:[0,1,1] neg_lo:[0,1,0]")
    a.label('L_B_chunk')
    a(f"""
    v_lshlrev_b32 v2, 16, v20
    v_lshlrev_b32 v3, 16, v21
    v_lshlrev_b32 v4, 16, v22
    v_lshlrev_b32 v5, 16, v23
    v_mul_f32 v2, {LOG2E}, v2
    v_lshrrev_b32 v20, 16, v20
    v_exp_f32 v2, v2
    v_lshrrev_b32 v21, 16, v21
    v_lshrrev_b32 v22, 16, v22
    v_cvt_pk_bf16_f32 v2, v2, v2
    v_lshrrev_b32 v23, 16, v23
    v_lshlrev_b32 v2, 16, v2
    v_mul_f32 v3, v3, v26
    v_mul_f32 v2, v2, v26
    v_mul_f32 v{BE}, {INV2PI}, v3
    v_mul_f32 v{AL}, {NLOG2E}, v2
    v_mul_f32 v{G}, v4, v27
    v_mul_f32 v{G+1}, v5, v27
    """)
    for (T,lit,W) in ((1,None,W1),(8,'0x41000000',W8),(256,'0x43800000',W256)):
        if lit is None:
            a(f"v_exp_f32 v2, v{AL}\nv_fract_f32 v3, v{BE}")
        else:
            a(f"v_mul_f32 v2, {lit}, v{AL}\nv_mul_f32 v3, {lit}, v{BE}\nv_exp_f32 v2, v2\nv_fract_f32 v3, v3")
        a(f"v_cos_f32 v4, v3\nv_sin_f32 v5, v3\nv_mul_f32 v{W}, v2, v4\nv_mul_f32 v{W+1}, v2, v5")
    cmul(W2, W1, W1, TM1)
    cmul(W4, W2, W2, TM1)
    e1 = []
    e1.append(('copyG', None, [0]))
    for r in range(1,8): e1.append(('cur', W1, [r]))
    e1.append(('G', W256, [8,9]))
    e1.append(('cur', W2, [10])); e1.append(('cur', W2, [11,12,13])); e1.append(('cur', W2, [14])); e1.append(('cur', W2, [15]))
    e1.append(('G', W256, [16])); e1.append(('cur', W4, [17])); e1.append(('cur', W4, [18]))
    e1.append(('G', W256, [20])); e1.append(('cur', W4, [21])); e1.append(('cur', W4, [22]))
    for b in range(4):
        e1.append(('G', W256, [24+2*b])); e1.append(('cur', W8, [25+2*b]))
    steps1 = []
    prevG = False
    for kind, mult, rows in e1:
        if kind == 'copyG':
            steps1.append(('pack', G, rows)); prevG = True
        elif kind == 'G':
            steps1.append(('mul', G, G, mult, rows)); prevG = True
        else:
            src = G if prevG else CUR1
            steps1.append(('mul', CUR1, src, mult, rows)); prevG = False
    steps2 = [('const1', None, [0]), ('pack', W8, [1])]
    steps2.append(('mul', CUR2, W8, W8, [2]))
    for j in range(3,32): steps2.append(('mul', CUR2, CUR2, W8, [j]))
    def emit_pair(s1, s2):
        seqs = []
        for s, tmp, pk, e in ((s1,TM1,PK1,1),(s2,TM2,PK2,2)):
            L = []
            if s is None: seqs.append(L); continue
            base = 32 if e==1 else 0
            neg = '-' if e==1 else ''
            if s[0]=='mul':
                _,dst,x,w,rows = s
                L.append(f"v_pk_mul_f32 v[{tmp}:{tmp+1}], v[{x}:{x+1}], v[{w}:{w+1}] op_sel_hi:[1,0]")
                L.append(f"v_pk_fma_f32 v[{dst}:{dst+1}], v[{x}:{x+1}], v[{w}:{w+1}], v[{tmp}:{tmp+1}] op_sel:[1,1,0] op_sel_hi:[0,1,1] neg_lo:[0,1,0]")
                L.append(f"v_cvt_pk_bf16_f32 v{pk}, v{dst}, {neg}v{dst+1}")
            elif s[0]=='pack':
                _,x,rows = s
                L.append(f"v_cvt_pk_bf16_f32 v{pk}, v{x}, {neg}v{x+1}")
            else:
                rows = s[2]
                L.append(f"v_mov_b32 v{pk}, 0x3f80")
            for r in rows: L.append(f"ds_write_addtid_b32 v{pk} offset:{(base+r)*ROW}")
            seqs.append(L)
        n = max(len(seqs[0]), len(seqs[1]))
        for i in range(n):
            for L in seqs:
                if i < len(L): a(L[i])
    n = max(len(steps1), len(steps2))
    for i in range(n):
        emit_pair(steps1[i] if i < len(steps1) else None, steps2[i] if i < len(steps2) else None)
    a("s_waitcnt lgkmcnt(0)")
    def rd(m, slot):
        a(f"ds_read_b128 v[{FA+4*slot}:{FA+4*slot+3}], v{VT} offset:{32*ROW+32*m}")
        a(f"ds_read_b128 v[{FB+4*slot}:{FB+4*slot+3}], v{VT} offset:{32*m}")
    for m in range(4): rd(m, m)
    for m in range(8):
        slot = m % 4
        pend = min(3-m if m<4 else 7-m, 3)
        issued = min(m+4, 8) if m>0 else 4
        a(f"s_waitcnt lgkmcnt({(issued-(m+1))*2})")
        a(f"v_mfma_f32_32x32x16_bf16 v[{D0}:{D0+15}], v[{FA+4*slot}:{FA+4*slot+3}], v[{FB+4*slot}:{FB+4*slot+3}], v[{D0}:{D0+15}]")
        if m+4 < 8: rd(m+4, slot)
    a(f"""
    s_add_u32 s43, s43, 1
    s_cmp_lt_u32 s43, 2
    s_cbranch_scc1 L_B_chunk
    """)
    a.stamp(3)
    a(f"""
    s_waitcnt vmcnt(0)
    s_barrier
    s_cmp_eq_u32 s{sW}, 0
    s_cbranch_scc0 L_B_nopub3
    """)
    a("s_mov_b32 s60, 0")
    a.label('L_B_gate')
    a(f"""
    v_readfirstlane_b32 s39, v29
    s_cmp_lg_u32 s39, 0
    s_cbranch_scc1 L_B_gateok
    s_add_u32 s60, s60, 1
    s_cmp_gt_u32 s60, {SPIN_MAX}
    s_cbranch_scc1 L_B_gateok
    s_sleep 1
    global_load_dword v29, v28, {sp(S_DBG)} sc1
    s_waitcnt vmcnt(0)
    s_branch L_B_gate
    """)
    a.label('L_B_gateok')
    a(f"""
    s_lshl_b32 s39, s{sG}, 7
    s_lshl_b32 s42, s{sIDX}, 2
    s_add_u32 s39, s39, s42
    s_add_u32 s39, s39, {F3}
    v_mov_b32 v2, s39
    v_mov_b32 v3, 1
    s_mov_b64 exec, 1
    global_store_dword v2, v3, {sp(S_WS)} sc1
    s_mov_b64 exec, -1
    ; poll F3[g][0..31]
    s_lshl_b32 s39, s{sG}, 7
    s_add_u32 s39, s39, {F3}
    v_and_b32 v2, 31, v1
    v_lshl_add_u32 v2, v2, 2, s39
    """)
    a.label('L_B_poll3')
    a(f"""
    global_load_dword v3, v2, {sp(S_WS)} sc1
    s_waitcnt vmcnt(0)
    v_cmp_ne_u32 vcc, 1, v3
    s_cmp_eq_u64 vcc, 0
    s_cbranch_scc1 L_B_nopub3
    s_add_u32 s60, s60, 1
    s_cmp_gt_u32 s60, {SPIN_MAX}
    s_cbranch_scc1 L_B_nopub3
    s_sleep 1
    s_branch L_B_poll3
    """)
    a.label('L_B_nopub3')
    a.stamp(4)
    SND = 72
    a(f"""
    s_mul_i32 s39, s{sW}, {TBL}
    v_lshl_add_u32 v2, v1, 4, s39
    s_xor_b32 s42, s{sW}, 1
    s_mul_i32 s42, s42, {TBL}
    v_lshl_add_u32 v3, v1, 4, s42
    s_cmp_eq_u32 s{sPI}, 0
    s_cbranch_scc0 L_B_snd1
    ds_write_b128 v2, v[{D0+8}:{D0+11}]
    ds_write_b128 v2, v[{D0+12}:{D0+15}] offset:1024
    s_branch L_B_snd2
    """)
    a.label('L_B_snd1')
    a(f"""
    ds_write_b128 v2, v[{D0}:{D0+3}]
    ds_write_b128 v2, v[{D0+4}:{D0+7}] offset:1024
    """)
    a.label('L_B_snd2')
    a(f"""
    s_waitcnt lgkmcnt(0)
    s_barrier
    v_lshrrev_b32 v4, 1, v0               ; P (0..127)
    v_and_b32 v5, 1, v0                   ; cc
    s_lshl_b32 s39, s{sG}, 18
    s_lshl_b32 s42, s{sIDX}, 5
    s_add_u32 s39, s39, s42
    s_add_u32 s39, s39, {UT}
    v_lshlrev_b32 v6, 10, v4
    v_lshl_add_u32 v6, v5, 4, v6
    v_add_u32 v6, s39, v6
    v_add_u32 v7, {128*1024}, v6
    global_load_dwordx4 v[12:15], v6, {sp(S_WS)} sc1
    global_load_dwordx4 v[16:19], v7, {sp(S_WS)} sc1
    ds_read_b128 v[{SND}:{SND+3}], v3
    ds_read_b128 v[{SND+4}:{SND+7}], v3 offset:1024
    v_mul_u32_u24 v8, {U_SZ}, v5
    v_lshl_add_u32 v8, v4, 4, v8
    v_add_u32 v8, {U_OFF+480}, v8
    s_mul_i32 s44, s{sC}, {R_SZ}
    v_and_b32 v9, 31, v1                  ; j
    v_lshrrev_b32 v10, 5, v1              ; h
    s_waitcnt lgkmcnt(0)
    s_barrier
    s_cmp_eq_u32 s{sPI}, 0
    s_cbranch_scc0 L_B_exp1
    """)
    S = SND
    for i in range(8): a(f"v_add_f32 v{S+i}, v{S+i}, v{D0+i}")
    a(f"""
    ; x0 = 2044 - 8j - 4h  -> byte 2*x0
    v_lshlrev_b32 v2, 4, v9
    v_lshl_add_u32 v2, v10, 3, v2
    v_sub_u32 v2, {2*2044}, v2
    v_add_u32 v2, s44, v2
    v_cvt_pk_bf16_f32 v80, v{S+3}, v{S+2}
    v_cvt_pk_bf16_f32 v81, v{S+1}, v{S+0}
    v_cvt_pk_bf16_f32 v82, v{S+7}, v{S+6}
    v_cvt_pk_bf16_f32 v83, v{S+5}, v{S+4}
    v_add_u32 v3, {-512 & 0xffffffff}, v2
    ds_write_b64 v2, v[80:81]
    ds_write_b64 v3, v[82:83]
    v_lshrrev_b32 v4, 2, v1
    v_mul_u32_u24 v4, {R_CP}, v4
    v_and_b32 v5, 3, v1
    v_lshl_add_u32 v4, v5, 4, v4
    v_add_u32 v4, s44, v4
    v_mov_b32 v84, 0
    v_mov_b32 v85, 0
    v_mov_b32 v86, 0
    v_mov_b32 v87, 0
    s_mov_b64 exec, 0xffff
    ds_write_b128 v4, v[84:87] offset:4096
    s_mov_b64 exec, -1
    s_mul_i32 s39, s{sC}, {U_SZ}
    s_add_u32 s39, s39, {U_OFF}
    v_lshl_add_u32 v4, v1, 4, s39
    s_mov_b64 exec, 0x3fffffff
    ds_write_b128 v4, v[84:87]
    s_mov_b64 exec, -1
    s_branch L_B_exp2
    """)
    a.label('L_B_exp1')
    for i in range(8): a(f"v_add_f32 v{S+i}, v{S+i}, v{D0+8+i}")
    a(f"""
    v_lshlrev_b32 v2, 4, v9
    v_lshl_add_u32 v2, v10, 9, v2
    v_sub_u32 v2, {2*(2040-512)}, v2
    v_add_u32 v2, s44, v2
    v_cvt_pk_bf16_f32 v80, v{S+2}, v{S+2}
    v_cvt_pk_bf16_f32 v81, v{S+1}, v{S+1}
    v_cvt_pk_bf16_f32 v82, v{S+1}, v{S+0}
    v_cvt_pk_bf16_f32 v83, v{S+0}, v{S+0}
    ds_write_b128 v2, v[80:83]
    v_lshlrev_b32 v3, 4, v9
    v_lshl_add_u32 v3, v10, 10, v3
    v_sub_u32 v3, {2*(2040-1024)}, v3
    v_add_u32 v3, s44, v3
    v_add_u32 v4, {-512 & 0xffffffff}, v3
    s_mov_b32 s46, 0xaaaaaaaa
    s_mov_b32 s47, 0xaaaaaaaa
    v_cndmask_b32_e64 v5, v{S+4}, v{S+5}, s[46:47]
    v_cndmask_b32_e64 v6, v{S+6}, v{S+7}, s[46:47]
    v_cvt_pk_bf16_f32 v84, v{S+5}, v{S+5}
    v_cvt_pk_bf16_f32 v85, v{S+5}, v5
    v_cvt_pk_bf16_f32 v86, v{S+4}, v{S+4}
    v_cvt_pk_bf16_f32 v87, v{S+4}, v{S+4}
    v_cvt_pk_bf16_f32 v88, v{S+7}, v{S+7}
    v_cvt_pk_bf16_f32 v89, v{S+7}, v6
    v_cvt_pk_bf16_f32 v90, v{S+6}, v{S+6}
    v_cvt_pk_bf16_f32 v91, v{S+6}, v{S+6}
    ds_write_b128 v3, v[84:87]
    ds_write_b128 v4, v[88:91]
    """)
    a.label('L_B_exp2')
    a.stamp(5)
    a(f"""
    s_waitcnt vmcnt(0)
    ds_write_b128 v8, v[12:15]
    ds_write_b128 v8, v[16:19] offset:{128*16}
    s_waitcnt lgkmcnt(0)
    s_barrier
    s_lshl_b32 s39, s{sPI}, 11
    s_add_u32 s39, s39, s44
    v_lshl_add_u32 v2, v1, 4, s39
    ds_read_b128 v[72:75], v2
    ds_read_b64 v[76:77], v2 offset:16
    ds_read_b128 v[80:83], v2 offset:1024
    ds_read_b64 v[84:85], v2 offset:1040
    """)
    for rho,(d) in enumerate((72,80)):
        o = 88 if rho==0 else 100
        a(f"s_waitcnt lgkmcnt({2 if rho==0 else 3})")
        for i in range(4): a(f"v_alignbit_b32 v{o+i}, v{d+i+1}, v{d+i}, 16")
        for i in range(4): a(f"v_mov_b32 v{o+4+i}, v{d+i+1}")
        for i in range(4): a(f"v_alignbit_b32 v{o+8+i}, v{d+i+2}, v{d+i+1}, 16")
        for cp in range(3):
            a(f"ds_write_b128 v2, v[{o+4*cp}:{o+4*cp+3}] offset:{(cp+1)*R_CP + 1024*rho}")
    ACC = 32
    AB = (64, 96)
    BB = (128, 160)
    VA, VB = 192, 193
    a(f"""
    v_and_b32 v2, 15, v1
    v_lshrrev_b32 v3, 4, v1
    v_sub_u32 v4, 3, v2
    v_and_b32 v4, 3, v4                  ; rho
    v_lshlrev_b32 v5, 3, v3
    v_sub_u32 v5, v5, v2
    v_add_u32 v5, 15, v5
    v_sub_u32 v5, v5, v4
    v_lshlrev_b32 v5, 1, v5
    v_mul_u32_u24 v4, {R_CP}, v4
    v_add_u32 v5, v5, v4
    s_lshl_b32 s39, s{sPI}, 8            ; 64 * 4*pi
    s_add_u32 s42, s39, s44
    v_add_u32 v{VA}, s42, v5
    ; B address: U + 2*(16j + 8h) + 64*r0
    v_lshlrev_b32 v5, 5, v2
    v_lshl_add_u32 v5, v3, 4, v5
    s_mul_i32 s42, s{sC}, {U_SZ}
    s_add_u32 s42, s42, {U_OFF}
    s_add_u32 s39, s39, s42
    v_add_u32 v{VB}, s39, v5
    s_waitcnt lgkmcnt(0)
    s_barrier
    """)
    a.stamp(6)
    def loads(r, buf):
        L = []
        for q in range(8):
            L.append(f"ds_read_b128 v[{BB[buf]+4*q}:{BB[buf]+4*q+3}], v{VB} offset:{512*q+64*r}")
            d = q
            off = 3584 - 512*d + 64*r
            L.append(f"ds_read_b64 v[{AB[buf]+4*d}:{AB[buf]+4*d+1}], v{VA} offset:{off}")
            L.append(f"ds_read_b64 v[{AB[buf]+4*d+2}:{AB[buf]+4*d+3}], v{VA} offset:{off+8}")
        return L
    L0 = loads(0, 0)
    for i,x in enumerate(L0):
        a(x)
        if i % 12 == 11: a("s_waitcnt lgkmcnt(0)")
    a("s_waitcnt lgkmcnt(0)")
    for r in range(4):
        buf = r & 1
        nxt = loads(r+1, buf^1) if r < 3 else []
        k = 0
        for q in range(8):
            for t in range(q, 8):
                c = f"v[{ACC+4*t}:{ACC+4*t+3}]"
                cin = '0' if (r == 0 and q == 0) else c
                a(f"v_mfma_f32_16x16x32_bf16 {c}, v[{AB[buf]+4*(t-q)}:{AB[buf]+4*(t-q)+3}], v[{BB[buf]+4*q}:{BB[buf]+4*q+3}], {cin}")
                if k < len(nxt): a(nxt[k]); k += 1
        if r < 3: a("s_waitcnt lgkmcnt(0)")
    a.stamp(7)
    RX = 64
    a(f"""
    s_lshl_b32 s39, s{sW}, 12
    s_add_u32 s39, s39, {EXC}
    v_lshl_add_u32 v2, v1, 4, s39
    s_xor_b32 s42, s{sW}, 1
    s_lshl_b32 s42, s42, 12
    s_add_u32 s42, s42, {EXC}
    v_lshl_add_u32 v3, v1, 4, s42
    v_and_b32 v4, 15, v1
    v_lshrrev_b32 v5, 4, v1
    v_lshlrev_b32 v6, 5, v4
    v_lshl_add_u32 v6, v5, 3, v6
    s_mul_i32 s42, s{sC}, {U_SZ}
    s_lshl_b32 s39, s{sPI}, 11
    s_add_u32 s42, s42, s39
    s_add_u32 s42, s42, {U_OFF+480}
    v_add_u32 v6, s42, v6
    ds_read_b64 v[96:97], v6
    ds_read_b64 v[98:99], v6 offset:512
    ds_read_b64 v[100:101], v6 offset:1024
    ds_read_b64 v[102:103], v6 offset:1536
    s_cmp_eq_u32 s{sPI}, 0
    s_cbranch_scc0 L_B_ce1
    """)
    for i in range(4): a(f"ds_write_b128 v2, v[{ACC+16+4*i}:{ACC+16+4*i+3}] offset:{1024*i}")
    a("s_branch L_B_ce2")
    a.label('L_B_ce1')
    for i in range(4): a(f"ds_write_b128 v2, v[{ACC+4*i}:{ACC+4*i+3}] offset:{1024*i}")
    for i in range(16): a(f"v_mov_b32 v{ACC+i}, v{ACC+16+i}")
    a.label('L_B_ce2')
    a(f"""
    s_waitcnt lgkmcnt(0)
    s_barrier
    """)
    for i in range(4): a(f"ds_read_b128 v[{RX+4*i}:{RX+4*i+3}], v3 offset:{1024*i}")
    a(f"""
    v_mov_b32 v7, s41
    s_mov_b32 s46, 0xffff0000
    s_lshl_b32 s39, s{sCH}, 12
    s_lshl_b32 s42, s{sPI}, 11
    s_add_u32 s39, s39, s42
    s_add_u32 s39, s39, {YT}
    v_and_b32 v8, 1, v5
    v_lshlrev_b32 v8, 9, v8
    v_lshrrev_b32 v9, 1, v5
    v_lshl_add_u32 v8, v9, 8, v8
    v_lshl_add_u32 v8, v4, 4, v8
    v_add_u32 v8, s39, v8
    s_waitcnt lgkmcnt(0)
    """)
    for i in range(4):
        u = 96+2*i
        a(f"""
        v_lshlrev_b32 v10, 16, v{u}
        v_and_b32 v11, s46, v{u}
        v_lshlrev_b32 v12, 16, v{u+1}
        v_and_b32 v13, s46, v{u+1}
        v_add_f32 v{RX+4*i}, v{RX+4*i}, v{ACC+4*i}
        v_add_f32 v{RX+4*i+1}, v{RX+4*i+1}, v{ACC+4*i+1}
        v_add_f32 v{RX+4*i+2}, v{RX+4*i+2}, v{ACC+4*i+2}
        v_add_f32 v{RX+4*i+3}, v{RX+4*i+3}, v{ACC+4*i+3}
        v_fmac_f32 v{RX+4*i}, v7, v10
        v_fmac_f32 v{RX+4*i+1}, v7, v11
        v_fmac_f32 v{RX+4*i+2}, v7, v12
        v_fmac_f32 v{RX+4*i+3}, v7, v13
        v_cvt_pk_bf16_f32 v{112+2*i}, v{RX+4*i}, v{RX+4*i+1}
        v_cvt_pk_bf16_f32 v{112+2*i+1}, v{RX+4*i+2}, v{RX+4*i+3}
        """)
    a(f"""
    v_permlane16_swap_b32 v112, v114
    v_permlane16_swap_b32 v113, v115
    v_permlane16_swap_b32 v116, v118
    v_permlane16_swap_b32 v117, v119
    global_store_dwordx4 v8, v[112:115], {sp(S_WS)} sc1
    global_store_dwordx4 v8, v[116:119], {sp(S_WS)} offset:1024 sc1
    v_lshrrev_b32 v2, 2, v0
    v_and_b32 v3, 3, v0
    s_lshl_b32 s39, s{sG}, 18
    s_lshr_b32 s42, s{sIDX}, 2
    s_lshl_b32 s42, s42, 9
    s_add_u32 s39, s39, s42
    s_and_b32 s42, s{sIDX}, 3
    s_lshl_b32 s42, s42, 6
    s_add_u32 s39, s39, s42
    s_add_u32 s39, s39, {YT}
    v_lshlrev_b32 v6, 12, v2
    v_lshl_add_u32 v6, v3, 4, v6
    v_add_u32 v6, s39, v6
    v_mul_u32_u24 v7, {Y1_S}, v2
    v_lshl_add_u32 v7, v3, 5, v7
    v_add_u32 v7, {Y1_OFF}, v7
    STAMP8
    s_waitcnt vmcnt(0)
    s_barrier
    s_cmp_eq_u32 s{sW}, 0
    s_cbranch_scc0 L_B_nopub4
    s_lshl_b32 s39, s{sG}, 7
    s_lshl_b32 s42, s{sIDX}, 2
    s_add_u32 s39, s39, s42
    s_add_u32 s39, s39, {F4}
    v_mov_b32 v10, s39
    v_mov_b32 v11, 1
    s_mov_b64 exec, 1
    global_store_dword v10, v11, {sp(S_WS)} sc1
    s_mov_b64 exec, -1
    s_lshl_b32 s39, s{sG}, 7
    s_add_u32 s39, s39, {F4}
    v_and_b32 v10, 31, v1
    v_lshl_add_u32 v10, v10, 2, s39
    """)
    a.label('L_B_poll4')
    a(f"""
    global_load_dword v11, v10, {sp(S_WS)} sc1
    s_waitcnt vmcnt(0)
    v_cmp_ne_u32 vcc, 1, v11
    s_cmp_eq_u64 vcc, 0
    s_cbranch_scc1 L_B_nopub4
    s_add_u32 s60, s60, 1
    s_cmp_gt_u32 s60, {SPIN_MAX}
    s_cbranch_scc1 L_B_nopub4
    s_sleep 1
    s_branch L_B_poll4
    """)
    a.label('L_B_nopub4')
    a(f"""
    s_barrier
    STAMP9
    global_load_dwordx4 v[12:15], v6, {sp(S_WS)} sc1
    global_load_dwordx4 v[16:19], v6, {sp(S_WS)} offset:256 sc1
    v_lshrrev_b32 v9, 4, v1
    v_and_b32 v10, 15, v1
    v_lshrrev_b32 v11, 2, v10
    v_lshl_add_u32 v11, v9, 3, v11
    v_mul_u32_u24 v11, {Y1_S}, v11
    v_and_b32 v24, 3, v10
    v_lshl_add_u32 v11, v24, 3, v11
    s_lshl_b32 s39, s{sW}, 5
    s_add_u32 s39, s39, {Y1_OFF}
    v_add_u32 v11, s39, v11
    s_mul_i32 s39, s{sW}, {16*O1_S}
    s_add_u32 s39, s39, {O1_OFF}
    v_mul_u32_u24 v24, {O1_S}, v10
    v_lshl_add_u32 v24, v9, 4, v24
    v_add_u32 v24, s39, v24
    v_lshrrev_b32 v25, 3, v1
    v_and_b32 v26, 7, v1
    v_mul_u32_u24 v27, {O1_S}, v25
    v_lshl_add_u32 v27, v26, 4, v27
    v_add_u32 v27, s39, v27
    s_lshl_b32 s39, s{sIDX}, 6
    s_lshl_b32 s42, s{sW}, 4
    s_add_u32 s39, s39, s42
    s_mul_i32 s39, s39, 1792
    s_lshl_b32 s42, s{sG}, 7
    s_add_u32 s39, s39, s42
    s_add_u32 s39, s39, 896
    v_mul_u32_u24 v28, 1792, v25
    v_lshl_add_u32 v28, v26, 4, v28
    v_add_u32 v28, s39, v28
    v_add_u32 v29, {8*1792}, v28
    s_waitcnt vmcnt(0)
    ds_write_b128 v7, v[12:15]
    ds_write_b128 v7, v[16:19] offset:16
    s_waitcnt lgkmcnt(0)
    s_barrier
    ds_read_b64_tr_b16 v[12:13], v11
    ds_read_b64_tr_b16 v[14:15], v11 offset:{4*Y1_S}
    ds_read_b64_tr_b16 v[16:17], v11 offset:{32*Y1_S}
    ds_read_b64_tr_b16 v[18:19], v11 offset:{36*Y1_S}
    s_waitcnt lgkmcnt(0)
    ds_write_b128 v24, v[12:15]
    ds_write_b128 v24, v[16:19] offset:64
    s_waitcnt lgkmcnt(0)
    ds_read_b128 v[12:15], v27
    ds_read_b128 v[16:19], v27 offset:{8*O1_S}
    s_waitcnt lgkmcnt(0)
    global_store_dwordx4 v28, v[12:15], {sp(S_OUT)}
    global_store_dwordx4 v29, v[16:19], {sp(S_OUT)}
    """)
    if a.stamps:
        a("s_waitcnt vmcnt(0)")
        a.stamp(10)
        a.stamp_dump(11, sW, DBG, 'B')
    a.endpgm()

def gen_ctrl(a):
    a(f"""
    s_waitcnt lgkmcnt(0)
    v_lshlrev_b32 v1, 5, v0
    v_mov_b32 v4, 0
    v_mov_b32 v5, 0
    v_mov_b32 v6, 0
    v_mov_b32 v7, 0
    global_store_dwordx4 v1, v[4:7], {sp(S_WS)} sc1
    global_store_dwordx4 v1, v[4:7], {sp(S_WS)} offset:16 sc1
    s_waitcnt vmcnt(0)
    s_barrier
    v_mov_b32 v2, 0
    v_mov_b32 v3, 1
    v_cmp_eq_u32 vcc, 0, v0
    s_and_saveexec_b64 s[40:41], vcc
    s_cbranch_execz L_ctrl_end
    global_store_dword v2, v3, {sp(S_DBG)} sc1
    """)
    a.label('L_ctrl_end')
    a.endpgm()
```

```python
import sys; sys.path.insert(0,'gen')
from common import *
from layout import *
import progB
try:
    import progA
except ImportError:
    progA = None
NAME = 'concat_heads__linear_kernel_hedgehog__ssm_conv_s4d__prompt_kernel'
HEAD = open('concat_heads__linear_kernel_hedgehog__ssm_conv_s4d__prompt.s.ref').read().split('; Override launch')[0]

def build(withA=True, withB=True, out='k.s', stamps=False, **kw):
    a = Asm(); a.stamps = stamps
    pf = kw.pop('pf', 1)
    PF = {0: 's_nop 0', 1: 'global_load_dword v255, v2, s[62:63]'}[pf]
    a(f"""
    s_cmp_gt_u32 s2, {CTRL}
    s_cbranch_scc1 L_exit
    s_getpc_b64 s[62:63]
    v_lshlrev_b32 v2, 7, v0
    v_min_u32 v2, L_exit-{NAME}-16, v2
    PREFETCH
    s_load_dwordx16 s[4:19], s[0:1], 0
    s_load_dwordx8 s[20:27], s[0:1], 64
    s_load_dwordx4 s[28:31], s[0:1], 96
    s_cmp_eq_u32 s2, {CTRL}
    s_cbranch_scc1 L_ctrl
    s_cmp_ge_u32 s2, {NA}
    s_cbranch_scc1 L_B
    """.replace('PREFETCH', PF).replace('    s_cmp_eq_u32 s2, %d' % CTRL, ('    s_memrealtime s[100:101]\n' if kw.get('dbgtime') else '') + '    s_cmp_eq_u32 s2, %d' % CTRL))
    a.dbgtime = kw.pop('dbgtime', False)
    if withA and progA: progA.gen_A(a, **kw)
    else: a("s_endpgm")
    a.label('L_B')
    if withB: progB.gen_B(a)
    else: a("s_endpgm")
    a.label('L_ctrl')
    progB.gen_ctrl(a)
    a.label('L_exit')
    a("s_endpgm")
    body = a.finalize()
    src = HEAD + f"; @launch grid=({GRID},1,1) block=(256,1,1) lds={LDS_BYTES}\n" + HDR_TARGET + kernel_wrap(NAME, body, 256, 102)
    open(out,'w').write(src)
    return src

if __name__ == '__main__':
    import argparse
    p = argparse.ArgumentParser()
    p.add_argument('--noA', action='store_true'); p.add_argument('--noB', action='store_true'); p.add_argument('-o', default='k.s'); p.add_argument('--stamps', type=int, default=0); p.add_argument('--pf', type=int, default=1); p.add_argument('--dbgtime', action='store_true')
    args = p.parse_args()
    build(not args.noA, not args.noB, args.o, stamps=args.stamps, pf=args.pf, dbgtime=args.dbgtime)
```

```python
import re

TRANS = ('v_exp_f32','v_log_f32','v_rcp_f32','v_rsq_f32','v_sqrt_f32','v_sin_f32','v_cos_f32','v_rcp_iflag_f32')

def _regs(tok):
    tok = tok.strip()
    neg = tok.startswith('-')
    if neg: tok = tok[1:]
    m = re.fullmatch(r'abs\((.*)\)', tok)
    if m: tok = m.group(1)
    m = re.fullmatch(r'\|(.*)\|', tok)
    if m: tok = m.group(1)
    m = re.fullmatch(r'([vsa])(\d+)', tok)
    if m: return [(m.group(1), int(m.group(2)))]
    m = re.fullmatch(r'([vsa])\[(\d+):(\d+)\]', tok)
    if m: return [(m.group(1), i) for i in range(int(m.group(2)), int(m.group(3))+1)]
    if tok == 'vcc': return [('s','vcc_lo'),('s','vcc_hi')]
    if tok in ('vcc_lo','vcc_hi','m0','scc'): return [('s',tok)]
    if tok == 'exec': return [('s','exec_lo'),('s','exec_hi')]
    if tok in ('exec_lo','exec_hi'): return [('s',tok)]
    return []

class Ins:
    __slots__ = ('text','op','ops','vr','vw','sr','sw','kind','passes','dpp','label','target','srcc','states','mods')
    def __init__(self, text):
        self.text = text
        self.label = None; self.target = None
        self.vr=set(); self.vw=set(); self.sr=set(); self.sw=set(); self.srcc=set()
        self.kind='other'; self.passes=0; self.dpp=False; self.states=1
        t = text.split(';')[0].strip()
        if t.endswith(':') and ' ' not in t:
            self.label = t[:-1]; self.kind='label'; self.op=''; self.states=0; return
        if t.startswith('.') or t == '':
            self.kind='directive'; self.op=''; self.states=0; return
        parts = t.split(None,1)
        op = parts[0]; self.op = op
        rest = parts[1] if len(parts)>1 else ''
        ops=[]; cur=''; depth=0
        for ch in rest:
            if ch in '[(': depth+=1
            if ch in '])': depth-=1
            if ch==',' and depth==0: ops.append(cur.strip()); cur=''
            else: cur+=ch
        if cur.strip(): ops.append(cur.strip())
        mods=''
        if ops:
            last = ops[-1]
            sp = last.split(None,1)
            ops[-1]=sp[0]
            if len(sp)>1: mods=sp[1]
        self.ops=ops; self.mods=mods
        R=lambda i: _regs(ops[i]) if i < len(ops) else []
        def rd(lst):
            for k,n in lst:
                (self.vr if k in 'va' else self.sr).add(n)
        def wr(lst):
            for k,n in lst:
                (self.vw if k in 'va' else self.sw).add(n)
        base = op
        for suf in ('_e32','_e64','_dpp','_sdwa'):
            if base.endswith(suf): base = base[:-len(suf)]
        if op.endswith('_dpp') or 'quad_perm' in mods or 'row_' in mods or 'wave_' in mods: self.dpp=True
        if base == 's_nop':
            self.kind='nop'; self.states=int(ops[0],0)+1; return
        if base in ('s_branch','s_cbranch_scc0','s_cbranch_scc1','s_cbranch_vccz','s_cbranch_vccnz','s_cbranch_execz','s_cbranch_execnz'):
            self.kind='branch'; self.target=ops[0]; return
        if base.startswith('v_mfma'):
            self.kind='mfma'
            self.passes = 8 if '32x32' in base else 4
            wr(R(0)); rd(R(1)); rd(R(2)); rd(R(3))
            self.srcc=set(n for k,n in R(3))
            return
        if base.startswith('v_'):
            self.kind='valu'
            if base in TRANS: self.kind='trans'
            if base.startswith('v_cmp'):
                wr(R(0));
                for i in range(1,len(ops)): rd(R(i))
                if base.startswith('v_cmpx'): wr(_regs('exec'))
                return
            if base in ('v_readfirstlane_b32','v_readlane_b32'):
                self.kind='readlane'
                wr(R(0)); rd(R(1)); rd(R(2)); return
            if base == 'v_writelane_b32':
                wr(R(0)); rd(R(0)); rd(R(1)); rd(R(2)); self.kind='writelane'; return
            if base.startswith('v_permlane'):
                self.kind='permlane'
                wr(R(0)); wr(R(1)); rd(R(0)); rd(R(1)); return
            if base in ('v_add_co_u32','v_sub_co_u32','v_subrev_co_u32'):
                wr(R(0)); wr(R(1)); rd(R(2)); rd(R(3)); return
            if base in ('v_addc_co_u32','v_subb_co_u32'):
                wr(R(0)); wr(R(1)); rd(R(2)); rd(R(3)); rd(R(4)); return
            wr(R(0))
            for i in range(1,len(ops)): rd(R(i))
            if base in ('v_fmac_f32','v_dot2c_f32_bf16','v_pk_fmac_f16','v_mac_f32'): rd(R(0))
            if self.dpp: rd(R(0))
            if base == 'v_cndmask_b32' and len(ops)==3: rd(_regs('vcc'))
            return
        if base.startswith('ds_'):
            self.kind='ds'
            if base.startswith('ds_read') or base.startswith('ds_bpermute') or base.startswith('ds_permute') or base.startswith('ds_swizzle'):
                wr(R(0))
                for i in range(1,len(ops)): rd(R(i))
                if 'addtid' in base: rd([('s','m0')])
            else:
                for i in range(len(ops)): rd(R(i))
                if 'addtid' in base: rd([('s','m0')])
                if 'rtn' in base: wr(R(0))
            return
        if base.startswith('buffer_') or base.startswith('global_'):
            self.kind='vmem'
            islds = (' lds' in (' '+mods)) or '_lds_' in base
            if base in ('buffer_inv','buffer_wbl2'): return
            if islds:
                for i in range(len(ops)): rd(R(i))
                rd([('s','m0')]); self.kind='ldsdma'; return
            if '_load' in base:
                wr(R(0))
                for i in range(1,len(ops)): rd(R(i))
            elif 'atomic' in base and ('sc0' in mods):
                wr(R(0))
                for i in range(0,len(ops)): rd(R(i))
            else:
                for i in range(len(ops)): rd(R(i))
                if ('x4' in base or 'x3' in base) and '_store' in base: self.kind='widestore'
            return
        if base.startswith('s_'):
            self.kind='salu'
            if base.startswith('s_load') or base.startswith('s_buffer_load') or base in ('s_memtime','s_memrealtime'):
                self.kind='smem'; wr(R(0))
                for i in range(1,len(ops)): rd(R(i))
                return
            if base in ('s_waitcnt','s_barrier','s_endpgm','s_sleep','s_setprio','s_setreg_b32','s_setreg_imm32_b32'): return
            if base.startswith('s_cmp') or base.startswith('s_bitcmp'):
                for i in range(len(ops)): rd(R(i))
                return
            if base in ('s_setpc_b64',):
                rd(R(0)); self.kind='branch'; self.target=None; return
            if base in ('s_swappc_b64',):
                wr(R(0)); rd(R(1)); self.kind='branch'; self.target=None; return
            wr(R(0))
            for i in range(1,len(ops)): rd(R(i))
            if 'saveexec' in base: wr(_regs('exec')); rd(_regs('exec'))
            return
        raise ValueError('unknown instruction: '+text)

def store_data_regs(ins):
    ops=ins.ops
    if ins.op.startswith('buffer_store'): return set(n for k,n in _regs(ops[0]))
    if ins.op.startswith('global_store'): return set(n for k,n in _regs(ops[1]))
    return set()

def required(prod, cons):
    need=0
    pv = prod.kind in ('valu','trans','permlane','readlane','writelane')
    cv = cons.kind in ('valu','trans','permlane','readlane','writelane')
    if prod.kind=='mfma':
        ov_r = prod.vw & cons.vr; ov_w = prod.vw & cons.vw
        P = prod.passes
        if cons.kind=='mfma':
            AB = cons.vr - cons.srcc
            ab_regs=set()
            for i in (1,2):
                ab_regs |= set(n for k,n in _regs(cons.ops[i]))
            if prod.vw & ab_regs: need=max(need, {4:8,8:12}[P])
            if prod.vw & cons.srcc:
                same = (prod.vw == cons.srcc) and prod.passes==cons.passes
                if not same: need=max(need, {4:6,8:10}[P])
            elif ov_w:
                need=max(need, {4:6,8:10}[P])
        else:
            if (ov_r or ov_w) and cons.kind in ('valu','trans','permlane','readlane','writelane','ds','vmem','widestore','ldsdma'):
                need=max(need, {4:8,8:12}[P])
            if cv and (prod.srcc & cons.vw): need=max(need, {4:3,8:7}[P])
    if pv:
        if cons.kind=='mfma' and (prod.vw & cons.vr): need=max(need,2)
        if cons.dpp and (prod.vw & cons.vr): need=max(need,2)
        if cons.kind=='permlane' and (prod.vw & cons.vr): need=max(need,2)
        if cons.kind=='readlane' and (prod.vw & cons.vr): need=max(need,1)
        if prod.kind=='trans' and cv and cons.kind!='trans' and (prod.vw & cons.vr): need=max(need,1)
        if prod.kind=='trans' and cons.kind=='trans' and (prod.vw & cons.vr): need=max(need,1)
        if prod.sw:
            o = prod.sw & cons.sr
            if o:
                if cons.kind in ('vmem','widestore','ldsdma','ds'): need=max(need,5)
                elif cons.kind in ('readlane','writelane'): need=max(need,4)
                elif cv: need=max(need,2)
                elif cons.kind=='mfma': need=max(need,4)
                elif cons.kind in ('salu','smem','branch'): need=max(need,1)
            if ('exec_lo' in prod.sw):
                if cons.dpp: need=max(need,5)
                if cons.kind in ('mfma','readlane','writelane','permlane'): need=max(need,4)
            if ('vcc_lo' in prod.sw) and cons.kind=='branch' and 'vcc' in cons.op: need=max(need,5)
    if prod.kind=='widestore':
        if cons.vw & store_data_regs(prod) and cons.kind not in ('label','directive'):
            need=max(need, 2)
    if prod.kind in ('salu',) and 'm0' in prod.sw:
        if cons.kind=='ldsdma' or (cons.kind=='ds' and 'addtid' in cons.op): need=max(need,1)
    return need

class Asm:
    def __init__(self):
        self.ins=[]
    def __call__(self, text):
        for line in text.split('\n'):
            line=line.strip()
            if not line or line.startswith(';'):
                continue
            if line.startswith('STAMP'):
                self.stamp(int(line[5:])); continue
            self.ins.append(Ins(line))
    def label(self, name): self.ins.append(Ins(name+':'))
    stamps = False
    dbgtime = False
    def endpgm(self):
        if self.dbgtime:
            self.nend = getattr(self,'nend',0)+1
            self(f"""s_mov_b64 exec, -1
            s_waitcnt vmcnt(0) lgkmcnt(0)
            s_and_b32 s98, s2, 56
            s_cmp_eq_u32 s98, 0
            s_cbranch_scc0 L_dbgskip{self.nend}
            v_readfirstlane_b32 s98, v0
            s_cmp_eq_u32 s98, 0
            s_cbranch_scc0 L_dbgskip{self.nend}
            s_memrealtime s[98:99]
            s_waitcnt lgkmcnt(0)
            s_not_b32 s100, s100
            v_mov_b32 v2, 16
            v_mov_b32 v3, s100
            v_mov_b32 v4, 20
            v_mov_b32 v5, s98
            s_mov_b64 exec, 1
            global_atomic_umax v2, v3, s[28:29]
            global_atomic_umax v4, v5, s[28:29]
            s_waitcnt vmcnt(0)""")
            self.label(f"L_dbgskip{self.nend}")
        self("s_endpgm")
    def stamp(self, i):
        if self.stamps == 2:
            self(f"s_memtime s[{76+2*i}:{77+2*i}]\ns_waitcnt lgkmcnt(0)")
        elif self.stamps:
            self(f"s_memrealtime s[{76+2*i}:{77+2*i}]\ns_waitcnt lgkmcnt(0)")
    def stamp_dump(self, n, sW, dbg_off, tag):
        if not self.stamps: return
        self(f"s_cmp_eq_u32 s{sW}, 0\ns_cbranch_scc0 L_nodump{tag}")
        self(f"s_lshl_b32 s39, s2, 7\ns_add_u32 s39, s39, {dbg_off}\nv_mov_b32 v2, s39\ns_mov_b64 exec, 1")
        for i in range(n):
            self(f"v_mov_b32 v3, s{76+2*i}\nglobal_store_dword v2, v3, s[30:31] offset:{4*i}")
        self("s_mov_b64 exec, -1")
        self.label(f"L_nodump{tag}")
    MAXW=13
    def finalize(self):
        ins=self.ins
        labels={x.label:i for i,x in enumerate(ins) if x.kind=='label'}
        out=[]
        window=[]
        fwd_pending={}
        def need_for(win, c):
            n=0
            for p,age in win:
                r=required(p,c)
                if r-age>n: n=r-age
            return n
        def advance(win, x):
            st=x.states
            win=[(p,a+st) for p,a in win if a+st<self.MAXW]
            if x.kind not in ('label','directive','nop'): win.append((x,0))
            return win
        def emit_nop(n):
            nonlocal window
            while n>0:
                k=min(n,16)
                nop=Ins('s_nop %d'%(k-1)); out.append(nop); window=advance(window,nop); n-=k
        for i,x in enumerate(ins):
            if x.kind=='label':
                for w in fwd_pending.get(x.label,[]):
                    window = window + w
                out.append(x); continue
            if x.kind=='directive':
                out.append(x); continue
            n=need_for(window,x)
            emit_nop(n)
            if x.kind=='branch' and x.target is not None:
                tgt=labels.get(x.target)
                if tgt is None: raise ValueError('unknown label '+x.target)
                if tgt<=i:
                    w=advance(window,x); tot=0; extra=0
                    j=tgt;
                    ww=list(w)
                    while j<len(ins) and tot<self.MAXW:
                        y=ins[j]; j+=1
                        if y.kind in ('label','directive'): continue
                        r=need_for(ww,y)
                        if r>extra: extra=max(extra,r)
                        ww=[(p,a+y.states) for p,a in ww]; tot+=y.states
                        if y.kind=='branch':
                            break
                    emit_nop(extra)
                else:
                    fwd_pending.setdefault(x.target,[]).append(advance(window,x))
            out.append(x); window=advance(window,x)
            if x.kind=='branch' and (x.op=='s_branch' or x.op=='s_setpc_b64' or x.op=='s_endpgm'):
                window=[]
            if x.op=='s_endpgm': window=[]
        self.out=out
        return '\n'.join(('' if y.kind in ('label',) else '    ')+y.text for y in out)
```
